```python
import torch

def _softmax(x, axis=-1):
    return torch.softmax(x, dim=axis)
def _gelu(x):
    return torch.nn.functional.gelu(x, approximate="tanh")
def _silu(x):
    return torch.nn.functional.silu(x)
def _sigmoid(x):
    return torch.sigmoid(x)
def _layernorm(x, axis=-1, eps=1e-5):
    m = x.mean(dim=axis, keepdim=True)
    v = x.var(dim=axis, keepdim=True, unbiased=False)
    return (x - m) / torch.sqrt(v + eps)
def _scatter_add(tgt, idx, src, axis=0):
    return tgt.clone().index_add_(axis, idx, src)
def _segment_sum(src, seg, n):
    out = torch.zeros((n,) + src.shape[1:], dtype=src.dtype)
    return out.index_add_(0, seg, src)
def _pad(x, pw):
    flat = tuple(v for pair in reversed(pw) for v in pair)
    return torch.nn.functional.pad(x, flat)

kernel_name = 'standalone__deepnorm__prompt'

def setup_inputs():

    _w = (lambda a: (lambda t: t.to(torch.bfloat16) if t.is_floating_point() else t)(torch.as_tensor(a)))
    B, S, D = 4, 2048, 448
    return {
        "x": _w((lambda *s: torch.randn(*s, dtype=torch.bfloat16) * 0.05)(B, S, D)),
        "f": _w((lambda *s: torch.randn(*s, dtype=torch.bfloat16) * 0.05)(B, S, D)),
        "g": _w((lambda *s: torch.randn(*s, dtype=torch.bfloat16) * 0.05)(D) + 1.0),
        "b": _w((lambda *s: torch.randn(*s, dtype=torch.bfloat16) * 0.4)(D)),
        "alpha": _w(float(2.0)),
    }

def reference(x, f, g, b, alpha):
    return _layernorm(alpha * x + f, axis=-1) * g + b
```

```python
NAME = "standalone__deepnorm__prompt_kernel"
ROWS = 8192
D = 448
ROWB = 896
NBYTES = ROWS * ROWB

HEADER = """; Kernarg layout for this problem (64 bytes, ptrs only, base s[0:1]):
"""

def wrap(body, grid, block, lds, nvgpr, nsgpr, comment=""):
    acc = (nvgpr + 3) // 4 * 4
    s = HEADER
    for l in comment.strip().splitlines():
        s += "; " + l + "\n"
    s += f"; @launch grid=({grid},1,1) block=({block},1,1) lds={lds}\n"
    s += f""".amdgcn_target "amdgcn-amd-amdhsa--gfx950"
.text
.globl {NAME}
.p2align 8
.type {NAME},@function
{NAME}:
"""
    s += body
    s += f"""
.section .rodata,"a"
.p2align 6
.amdhsa_kernel {NAME}
  .amdhsa_next_free_vgpr {nvgpr}
  .amdhsa_next_free_sgpr {nsgpr}
  .amdhsa_accum_offset {acc}
  .amdhsa_group_segment_fixed_size 0
  .amdhsa_kernarg_size 64
  .amdhsa_user_sgpr_count 2
  .amdhsa_user_sgpr_kernarg_segment_ptr 1
  .amdhsa_system_sgpr_workgroup_id_x 1
  .amdhsa_float_denorm_mode_32 3
.end_amdhsa_kernel
"""
    return s

class Asm:
    def __init__(self):
        self.lines = []
    def __call__(self, s):
        for l in s.strip("\n").split("\n"):
            l = l.strip()
            if l:
                self.lines.append(("" if l.endswith(":") else "    ") + l)
    def text(self):
        return "\n".join(self.lines) + "\n"
```

```python
import sys, struct
from common import *

def f32(x):
    return "0x%08x" % struct.unpack("<I", struct.pack("<f", x))[0]

def gen(wpb=4, ld="", st="", twopass=True):
    a = Asm()
    block = 64 * wpb
    grid = ROWS // 8 // wpb
    X = 8
    F = 36
    Y = 64
    G = 120
    B = 176
    GR = Y
    BR = Y + 28
    T = 232
    a(f"""
    s_load_dwordx8 s[4:11], s[0:1], 0
    s_load_dwordx4 s[12:15], s[0:1], 32
    s_lshl_b32 s3, s2, {6 + (wpb.bit_length()-1)}
    v_add_u32 v1, s3, v0
    v_lshrrev_b32 v1, 3, v1
    v_and_b32 v2, 7, v0
    v_lshlrev_b32 v2, 4, v2
    v_mul_u32_u24 v1, {ROWB}, v1
    v_add_u32 v1, v1, v2
    s_mov_b32 s18, {NBYTES}
    s_mov_b32 s19, 0x20000
    s_mov_b32 s22, {NBYTES}
    s_mov_b32 s23, 0x20000
    s_mov_b32 s26, {ROWB}
    s_mov_b32 s27, 0x20000
    s_mov_b32 s30, {ROWB}
    s_mov_b32 s31, 0x20000
    s_mov_b32 s34, {NBYTES}
    s_mov_b32 s35, 0x20000
    s_waitcnt lgkmcnt(0)
    s_load_dword s36, s[12:13], 0
    s_mov_b32 s16, s4
    s_mov_b32 s17, s5
    s_mov_b32 s20, s6
    s_mov_b32 s21, s7
    s_mov_b32 s24, s8
    s_mov_b32 s25, s9
    s_mov_b32 s28, s10
    s_mov_b32 s29, s11
    s_mov_b32 s32, s14
    s_mov_b32 s33, s15
    """)
    for j in range(7):
        a(f"buffer_load_dwordx4 v[{GR+4*j}:{GR+4*j+3}], v2, s[24:27], 0 offen offset:{128*j}")
        a(f"buffer_load_dwordx4 v[{BR+4*j}:{BR+4*j+3}], v2, s[28:31], 0 offen offset:{128*j}")
    for j in range(7):
        a(f"buffer_load_dwordx4 v[{X+4*j}:{X+4*j+3}], v1, s[16:19], 0 offen offset:{128*j} {ld}")
        a(f"buffer_load_dwordx4 v[{F+4*j}:{F+4*j+3}], v1, s[20:23], 0 offen offset:{128*j} {ld}")
    a("s_mov_b32 s38, 0xffff0000")
    a("s_waitcnt lgkmcnt(0)")
    a("s_lshl_b32 s36, s36, 16")
    a("s_waitcnt vmcnt(14)")
    for k in range(28):
        a(f"v_lshlrev_b32 v{G+2*k}, 16, v{GR+k}")
        a(f"v_and_b32 v{G+2*k+1}, s38, v{GR+k}")
        a(f"v_lshlrev_b32 v{B+2*k}, 16, v{BR+k}")
        a(f"v_and_b32 v{B+2*k+1}, s38, v{BR+k}")
    S = T
    Q = T + 2
    U = T + 4
    for j in range(7):
        a(f"s_waitcnt vmcnt({12-2*j})")
        for k in range(4):
            i = 4*j + k
            u = U + 4*(k & 1)
            a(f"v_lshlrev_b32 v{u}, 16, v{X+i}")
            a(f"v_and_b32 v{u+1}, s38, v{X+i}")
            a(f"v_lshlrev_b32 v{u+2}, 16, v{F+i}")
            a(f"v_and_b32 v{u+3}, s38, v{F+i}")
            a(f"v_pk_fma_f32 v[{Y+2*i}:{Y+2*i+1}], v[{u}:{u+1}], s[36:37], v[{u+2}:{u+3}] op_sel_hi:[1,0,1]")
            if i == 1:
                a(f"v_pk_add_f32 v[{S}:{S+1}], v[{Y}:{Y+1}], v[{Y+2}:{Y+3}]")
            elif i > 1:
                a(f"v_pk_add_f32 v[{S}:{S+1}], v[{S}:{S+1}], v[{Y+2*i}:{Y+2*i+1}]")
            if not twopass:
                if i == 0:
                    a(f"v_pk_mul_f32 v[{Q}:{Q+1}], v[{Y}:{Y+1}], v[{Y}:{Y+1}]")
                else:
                    a(f"v_pk_fma_f32 v[{Q}:{Q+1}], v[{Y+2*i}:{Y+2*i+1}], v[{Y+2*i}:{Y+2*i+1}], v[{Q}:{Q+1}]")
    def red8(r):
        a("s_nop 1")
        a(f"v_add_f32_dpp v{r}, v{r}, v{r} quad_perm:[1,0,3,2] row_mask:0xf bank_mask:0xf")
        a("s_nop 1")
        a(f"v_add_f32_dpp v{r}, v{r}, v{r} quad_perm:[2,3,0,1] row_mask:0xf bank_mask:0xf")
        a("s_nop 1")
        a(f"v_add_f32_dpp v{r}, v{r}, v{r} row_half_mirror row_mask:0xf bank_mask:0xf")
    a(f"s_mov_b32 s40, {f32(1.0/448)}")
    a(f"v_mov_b32 v{U+2}, {f32(1e-5)}")
    a(f"v_add_f32 v{S}, v{S}, v{S+1}")
    if twopass:
        red8(S)
        a(f"v_mul_f32 v{S}, s40, v{S}")
        for i in range(28):
            a(f"v_pk_add_f32 v[{Y+2*i}:{Y+2*i+1}], v[{Y+2*i}:{Y+2*i+1}], v[{S}:{S+1}] op_sel_hi:[1,0] neg_lo:[0,1] neg_hi:[0,1]")
            if i == 0:
                a(f"v_pk_mul_f32 v[{Q}:{Q+1}], v[{Y}:{Y+1}], v[{Y}:{Y+1}]")
            else:
                a(f"v_pk_fma_f32 v[{Q}:{Q+1}], v[{Y+2*i}:{Y+2*i+1}], v[{Y+2*i}:{Y+2*i+1}], v[{Q}:{Q+1}]")
        a(f"v_add_f32 v{Q}, v{Q}, v{Q+1}")
        red8(Q)
        a(f"v_fma_f32 v{Q}, v{Q}, s40, v{U+2}")
        a(f"v_rsq_f32 v{Q}, v{Q}")
        a("s_nop 0")
        for j in range(7):
            for k in range(4):
                i = 4*j + k
                a(f"v_pk_mul_f32 v[{Y+2*i}:{Y+2*i+1}], v[{Y+2*i}:{Y+2*i+1}], v[{Q}:{Q+1}] op_sel_hi:[1,0]")
                a(f"v_pk_fma_f32 v[{Y+2*i}:{Y+2*i+1}], v[{Y+2*i}:{Y+2*i+1}], v[{G+2*i}:{G+2*i+1}], v[{B+2*i}:{B+2*i+1}]")
                a(f"v_cvt_pk_bf16_f32 v{X+i}, v{Y+2*i}, v{Y+2*i+1}")
            a(f"buffer_store_dwordx4 v[{X+4*j}:{X+4*j+3}], v1, s[32:35], 0 offen offset:{128*j} {st}")
    else:
        a(f"v_add_f32 v{Q}, v{Q}, v{Q+1}")
        a("s_nop 0")
        for mod in ["quad_perm:[1,0,3,2]", "quad_perm:[2,3,0,1]", "row_half_mirror"]:
            a(f"v_add_f32_dpp v{S}, v{S}, v{S} {mod} row_mask:0xf bank_mask:0xf")
            a("s_nop 0")
            a(f"v_add_f32_dpp v{Q}, v{Q}, v{Q} {mod} row_mask:0xf bank_mask:0xf")
            a("s_nop 0")
        a(f"v_mul_f32 v{S}, s40, v{S}")
        a(f"v_mul_f32 v{Q}, s40, v{Q}")
        a(f"v_fma_f32 v{Q}, -v{S}, v{S}, v{Q}")
        a(f"v_max_f32 v{Q}, 0, v{Q}")
        a(f"v_add_f32 v{Q}, v{Q}, v{U+2}")
        a(f"v_rsq_f32 v{Q}, v{Q}")
        a("s_nop 0")
        a(f"v_mul_f32 v{Q+1}, -v{S}, v{Q}")
        for j in range(7):
            for k in range(4):
                i = 4*j + k
                a(f"v_pk_fma_f32 v[{Y+2*i}:{Y+2*i+1}], v[{Y+2*i}:{Y+2*i+1}], v[{Q}:{Q+1}], v[{Q}:{Q+1}] op_sel:[0,0,1] op_sel_hi:[1,0,1]")
                a(f"v_pk_fma_f32 v[{Y+2*i}:{Y+2*i+1}], v[{Y+2*i}:{Y+2*i+1}], v[{G+2*i}:{G+2*i+1}], v[{B+2*i}:{B+2*i+1}]")
                a(f"v_cvt_pk_bf16_f32 v{X+i}, v{Y+2*i}, v{Y+2*i+1}")
            a(f"buffer_store_dwordx4 v[{X+4*j}:{X+4*j+3}], v1, s[32:35], 0 offen offset:{128*j} {st}")
    a("s_endpgm")
    return wrap(a.text(), grid, block, 0, 248, 48, "layout C")

if __name__ == "__main__":
    open("../var/c_w4.s", "w").write(gen(4))
    open("../var/c_w1.s", "w").write(gen(1))
    open("../var/c_w4_nt.s", "w").write(gen(4, ld="nt", st="nt"))
    open("../var/c_w4_sc1.s", "w").write(gen(4, ld="", st="sc1"))
    open("../var/c_w4_sc01.s", "w").write(gen(4, ld="nt", st="sc0 sc1"))
    open("../var/c_w4_1p.s", "w").write(gen(4, twopass=False))
```

```python
import sys, struct
from common import *

def f32(x):
    return "0x%08x" % struct.unpack("<I", struct.pack("<f", x))[0]

def gen(wpb=4, ld="", st="", twopass=True):
    a = Asm()
    block = 64 * wpb
    grid = ROWS // 8 // wpb
    X = 8
    F = 36
    Y = 64
    G = 120
    B = 176
    GR = Y
    BR = Y + 28
    T = 232
    a(f"""
    ;@T0
    s_load_dwordx8 s[4:11], s[0:1], 0
    s_load_dwordx4 s[12:15], s[0:1], 32
    s_lshl_b32 s3, s2, {6 + (wpb.bit_length()-1)}
    v_add_u32 v1, s3, v0
    v_lshrrev_b32 v1, 3, v1
    v_and_b32 v2, 7, v0
    v_lshlrev_b32 v2, 4, v2
    v_mul_u32_u24 v1, {ROWB}, v1
    v_add_u32 v1, v1, v2
    s_mov_b32 s18, {NBYTES}
    s_mov_b32 s19, 0x20000
    s_mov_b32 s22, {NBYTES}
    s_mov_b32 s23, 0x20000
    s_mov_b32 s26, {ROWB}
    s_mov_b32 s27, 0x20000
    s_mov_b32 s30, {ROWB}
    s_mov_b32 s31, 0x20000
    s_mov_b32 s34, {NBYTES}
    s_mov_b32 s35, 0x20000
    s_waitcnt lgkmcnt(0)
    ;@T1
    s_load_dword s36, s[12:13], 0
    s_mov_b32 s16, s4
    s_mov_b32 s17, s5
    s_mov_b32 s20, s6
    s_mov_b32 s21, s7
    s_mov_b32 s24, s8
    s_mov_b32 s25, s9
    s_mov_b32 s28, s10
    s_mov_b32 s29, s11
    s_mov_b32 s32, s14
    s_mov_b32 s33, s15
    """)
    for j in range(7):
        a(f"buffer_load_dwordx4 v[{GR+4*j}:{GR+4*j+3}], v2, s[24:27], 0 offen offset:{128*j}")
        a(f"buffer_load_dwordx4 v[{BR+4*j}:{BR+4*j+3}], v2, s[28:31], 0 offen offset:{128*j}")
    for j in range(7):
        a(f"buffer_load_dwordx4 v[{X+4*j}:{X+4*j+3}], v1, s[16:19], 0 offen offset:{128*j} {ld}")
        a(f"buffer_load_dwordx4 v[{F+4*j}:{F+4*j+3}], v1, s[20:23], 0 offen offset:{128*j} {ld}")
    a("s_mov_b32 s38, 0xffff0000")
    a("s_waitcnt lgkmcnt(0)")
    a("s_lshl_b32 s36, s36, 16")
    a(";@T2")
    a("s_waitcnt vmcnt(14)")
    a(";@T3")
    for k in range(28):
        a(f"v_lshlrev_b32 v{G+2*k}, 16, v{GR+k}")
        a(f"v_and_b32 v{G+2*k+1}, s38, v{GR+k}")
        a(f"v_lshlrev_b32 v{B+2*k}, 16, v{BR+k}")
        a(f"v_and_b32 v{B+2*k+1}, s38, v{BR+k}")
    S = T
    Q = T + 2
    U = T + 4
    for j in range(7):
        a(f"s_waitcnt vmcnt({12-2*j})")
        if j == 0: a(";@T4")
        if j == 6: a(";@T5")
        for k in range(4):
            i = 4*j + k
            u = U + 4*(k & 1)
            a(f"v_lshlrev_b32 v{u}, 16, v{X+i}")
            a(f"v_and_b32 v{u+1}, s38, v{X+i}")
            a(f"v_lshlrev_b32 v{u+2}, 16, v{F+i}")
            a(f"v_and_b32 v{u+3}, s38, v{F+i}")
            a(f"v_pk_fma_f32 v[{Y+2*i}:{Y+2*i+1}], v[{u}:{u+1}], s[36:37], v[{u+2}:{u+3}] op_sel_hi:[1,0,1]")
            if i == 1:
                a(f"v_pk_add_f32 v[{S}:{S+1}], v[{Y}:{Y+1}], v[{Y+2}:{Y+3}]")
            elif i > 1:
                a(f"v_pk_add_f32 v[{S}:{S+1}], v[{S}:{S+1}], v[{Y+2*i}:{Y+2*i+1}]")
            if not twopass:
                if i == 0:
                    a(f"v_pk_mul_f32 v[{Q}:{Q+1}], v[{Y}:{Y+1}], v[{Y}:{Y+1}]")
                else:
                    a(f"v_pk_fma_f32 v[{Q}:{Q+1}], v[{Y+2*i}:{Y+2*i+1}], v[{Y+2*i}:{Y+2*i+1}], v[{Q}:{Q+1}]")
    def red8(r):
        a("s_nop 1")
        a(f"v_add_f32_dpp v{r}, v{r}, v{r} quad_perm:[1,0,3,2] row_mask:0xf bank_mask:0xf")
        a("s_nop 1")
        a(f"v_add_f32_dpp v{r}, v{r}, v{r} quad_perm:[2,3,0,1] row_mask:0xf bank_mask:0xf")
        a("s_nop 1")
        a(f"v_add_f32_dpp v{r}, v{r}, v{r} row_half_mirror row_mask:0xf bank_mask:0xf")
    a(f"s_mov_b32 s40, {f32(1.0/448)}")
    a(f"v_mov_b32 v{U+2}, {f32(1e-5)}")
    a(f"v_add_f32 v{S}, v{S}, v{S+1}")
    if twopass:
        red8(S)
        a(f"v_mul_f32 v{S}, s40, v{S}")
        for i in range(28):
            a(f"v_pk_add_f32 v[{Y+2*i}:{Y+2*i+1}], v[{Y+2*i}:{Y+2*i+1}], v[{S}:{S+1}] op_sel_hi:[1,0] neg_lo:[0,1] neg_hi:[0,1]")
            if i == 0:
                a(f"v_pk_mul_f32 v[{Q}:{Q+1}], v[{Y}:{Y+1}], v[{Y}:{Y+1}]")
            else:
                a(f"v_pk_fma_f32 v[{Q}:{Q+1}], v[{Y+2*i}:{Y+2*i+1}], v[{Y+2*i}:{Y+2*i+1}], v[{Q}:{Q+1}]")
        a(f"v_add_f32 v{Q}, v{Q}, v{Q+1}")
        red8(Q)
        a(f"v_fma_f32 v{Q}, v{Q}, s40, v{U+2}")
        a(f"v_rsq_f32 v{Q}, v{Q}")
        a("s_nop 0")
        for j in range(7):
            for k in range(4):
                i = 4*j + k
                a(f"v_pk_mul_f32 v[{Y+2*i}:{Y+2*i+1}], v[{Y+2*i}:{Y+2*i+1}], v[{Q}:{Q+1}] op_sel_hi:[1,0]")
                a(f"v_pk_fma_f32 v[{Y+2*i}:{Y+2*i+1}], v[{Y+2*i}:{Y+2*i+1}], v[{G+2*i}:{G+2*i+1}], v[{B+2*i}:{B+2*i+1}]")
                a(f"v_cvt_pk_bf16_f32 v{X+i}, v{Y+2*i}, v{Y+2*i+1}")
            a(f"buffer_store_dwordx4 v[{X+4*j}:{X+4*j+3}], v1, s[32:35], 0 offen offset:{128*j} {st}")
    else:
        a(f"v_add_f32 v{Q}, v{Q}, v{Q+1}")
        a("s_nop 0")
        for mod in ["quad_perm:[1,0,3,2]", "quad_perm:[2,3,0,1]", "row_half_mirror"]:
            a(f"v_add_f32_dpp v{S}, v{S}, v{S} {mod} row_mask:0xf bank_mask:0xf")
            a("s_nop 0")
            a(f"v_add_f32_dpp v{Q}, v{Q}, v{Q} {mod} row_mask:0xf bank_mask:0xf")
            a("s_nop 0")
        a(f"v_mul_f32 v{S}, s40, v{S}")
        a(f"v_mul_f32 v{Q}, s40, v{Q}")
        a(f"v_fma_f32 v{Q}, -v{S}, v{S}, v{Q}")
        a(f"v_max_f32 v{Q}, 0, v{Q}")
        a(f"v_add_f32 v{Q}, v{Q}, v{U+2}")
        a(f"v_rsq_f32 v{Q}, v{Q}")
        a("s_nop 0")
        a(f"v_mul_f32 v{Q+1}, -v{S}, v{Q}")
        for j in range(7):
            for k in range(4):
                i = 4*j + k
                a(f"v_pk_fma_f32 v[{Y+2*i}:{Y+2*i+1}], v[{Y+2*i}:{Y+2*i+1}], v[{Q}:{Q+1}], v[{Q}:{Q+1}] op_sel:[0,0,1] op_sel_hi:[1,0,1]")
                a(f"v_pk_fma_f32 v[{Y+2*i}:{Y+2*i+1}], v[{Y+2*i}:{Y+2*i+1}], v[{G+2*i}:{G+2*i+1}], v[{B+2*i}:{B+2*i+1}]")
                a(f"v_cvt_pk_bf16_f32 v{X+i}, v{Y+2*i}, v{Y+2*i+1}")
            a(f"buffer_store_dwordx4 v[{X+4*j}:{X+4*j+3}], v1, s[32:35], 0 offen offset:{128*j} {st}")
    a(";@T6")
    a("s_endpgm")
    return wrap(a.text(), grid, block, 0, 248, 48, "layout C")

if __name__ == "__main__":
    open("../var/c_w4.s", "w").write(gen(4))
    open("../var/c_w1.s", "w").write(gen(1))
    open("../var/c_w4_nt.s", "w").write(gen(4, ld="nt", st="nt"))
    open("../var/c_w4_sc1.s", "w").write(gen(4, ld="", st="sc1"))
    open("../var/c_w4_sc01.s", "w").write(gen(4, ld="nt", st="sc0 sc1"))
    open("../var/c_w4_1p.s", "w").write(gen(4, twopass=False))
```

```python
import re
def instrument(src, wg=0, amp=None, ampk=20, base=60):
    n = 0
    out = []
    for l in src.split("\n"):
        m = re.match(r"\s*;@T(\d+)(w?)", l)
        if m:
            k = int(m.group(1)); n = max(n, k + 1)
            out.append(f"    s_memrealtime s[{base+4*k}:{base+4*k+1}]")
            out.append(f"    s_memtime s[{base+4*k+2}:{base+4*k+3}]")
            if m.group(2):
                out.append("    s_waitcnt lgkmcnt(0)")
            continue
        if l.strip() == "s_endpgm":
            k = n; n += 1
            out.append("    s_waitcnt vmcnt(0)")
            out.append(f"    s_memrealtime s[{base+4*k}:{base+4*k+1}]")
            out.append(f"    s_memtime s[{base+4*k+2}:{base+4*k+3}]")
            out.append("    s_load_dwordx2 s[52:53], s[0:1], 48")
            out.append("    s_waitcnt lgkmcnt(0)")
            out.append(f"    s_cmp_lg_u32 s2, {wg}")
            out.append("    s_cbranch_scc1 L_dbg_done")
            out.append("    v_readfirstlane_b32 s56, v0")
            out.append("    s_nop 3")
            out.append("    s_cmp_lg_u32 s56, 0")
            out.append("    s_cbranch_scc1 L_dbg_done")
            out.append("    s_mov_b32 s54, 256")
            out.append("    s_mov_b32 s55, 0x20000")
            out.append("    s_mov_b64 exec, 1")
            out.append("    v_mov_b32 v1, 0")
            for i in range(1, n):
                out.append(f"    s_sub_u32 s57, s{base+4*i}, s{base}")
                out.append(f"    v_mov_b32 v2, s57")
                out.append(f"    buffer_store_dword v2, v1, s[52:55], 0 offen offset:{4*(i-1)}")
                out.append(f"    s_sub_u32 s57, s{base+4*i+2}, s{base+2}")
                out.append(f"    v_mov_b32 v3, s57")
                out.append(f"    buffer_store_dword v3, v1, s[52:55], 0 offen offset:{32+4*(i-1)}")
                out.append("    s_waitcnt vmcnt(0)")
            if amp is not None:
                a0, a1 = amp
                out.append(f"    s_sub_u32 s57, s{base+4*a1}, s{base+4*a0}")
                out.append(f"    s_min_u32 s57, s57, 5000")
                out.append(f"    s_mul_i32 s57, s57, {ampk}")
                out.append("    s_memrealtime s[58:59]")
                out.append("    s_waitcnt lgkmcnt(0)")
                out.append("    s_mov_b32 s56, s58")
                out.append("L_spin:")
                out.append("    s_memrealtime s[58:59]")
                out.append("    s_waitcnt lgkmcnt(0)")
                out.append("    s_sub_u32 s58, s58, s56")
                out.append("    s_cmp_lt_u32 s58, s57")
                out.append("    s_cbranch_scc1 L_spin")
            out.append("L_dbg_done:")
            out.append("    s_endpgm")
            continue
        out.append(l)
    s = "\n".join(out)
    s = re.sub(r"next_free_sgpr \d+", "next_free_sgpr 102", s)
    return s
```

```python
from genC import gen
from instr import instrument
src = gen(4)
open("../var/d0.s","w").write(instrument(src, wg=0))
open("../var/d1.s","w").write(instrument(src, wg=200))
open("../var/d_a07.s","w").write(instrument(src, wg=0, amp=(0,7), ampk=20))
open("../var/d_a01.s","w").write(instrument(src, wg=0, amp=(0,1), ampk=20))
open("../var/d_a14.s","w").write(instrument(src, wg=0, amp=(1,4), ampk=20))
open("../var/d_a57.s","w").write(instrument(src, wg=0, amp=(5,7), ampk=20))
```

```python
import re
def instrument(src, wg=0, amp=None, ampk=20, base=60):
    n = 0
    out = []
    for l in src.split("\n"):
        m = re.match(r"\s*;@T(\d+)(w?)", l)
        if m:
            k = int(m.group(1)); n = max(n, k + 1)
            out.append(f"    s_memrealtime s[{base+4*k}:{base+4*k+1}]")
            out.append(f"    s_memtime s[{base+4*k+2}:{base+4*k+3}]")
            if m.group(2):
                out.append("    s_waitcnt lgkmcnt(0)")
            continue
        if l.strip() == "s_endpgm":
            k = n; n += 1
            out.append("    s_waitcnt vmcnt(0)")
            out.append(f"    s_memrealtime s[{base+4*k}:{base+4*k+1}]")
            out.append(f"    s_memtime s[{base+4*k+2}:{base+4*k+3}]")
            out.append("    s_load_dwordx2 s[52:53], s[0:1], 48")
            out.append("    s_waitcnt lgkmcnt(0)")
            out.append(f"    s_cmp_lg_u32 s2, {wg}")
            out.append("    s_cbranch_scc1 L_dbg_done")
            out.append("    v_readfirstlane_b32 s56, v0")
            out.append("    s_nop 3")
            out.append("    s_cmp_lg_u32 s56, 0")
            out.append("    s_cbranch_scc1 L_dbg_done")
            out.append("    s_mov_b32 s54, 256")
            out.append("    s_mov_b32 s55, 0x20000")
            out.append("    s_mov_b64 exec, 1")
            out.append("    v_mov_b32 v1, 0")
            for i in range(1, n):
                out.append(f"    s_sub_u32 s57, s{base+4*i}, s{base}")
                out.append(f"    v_mov_b32 v2, s57")
                out.append(f"    buffer_store_dword v2, v1, s[52:55], 0 offen offset:{4*(i-1)}")
                out.append(f"    s_sub_u32 s57, s{base+4*i+2}, s{base+2}")
                out.append(f"    v_mov_b32 v3, s57")
                out.append(f"    buffer_store_dword v3, v1, s[52:55], 0 offen offset:{32+4*(i-1)}")
                out.append("    s_waitcnt vmcnt(0)")
            if amp is not None:
                a0, a1 = amp
                out.append(f"    s_sub_u32 s57, s{base+4*a1}, s{base+4*a0}")
                out.append(f"    s_min_u32 s57, s57, 5000")
                out.append(f"    s_mul_i32 s57, s57, {ampk}")
                out.append("    s_memrealtime s[58:59]")
                out.append("    s_waitcnt lgkmcnt(0)")
                out.append("    s_mov_b32 s56, s58")
                out.append("L_spin:")
                out.append("    s_memrealtime s[58:59]")
                out.append("    s_waitcnt lgkmcnt(0)")
                out.append("    s_sub_u32 s58, s58, s56")
                out.append("    s_cmp_lt_u32 s58, s57")
                out.append("    s_cbranch_scc1 L_spin")
            out.append("L_dbg_done:")
            out.append("    s_endpgm")
            continue
        out.append(l)
    s = "\n".join(out)
    s = re.sub(r"next_free_sgpr \d+", "next_free_sgpr 102", s)
    return s

def instrument_global(src, nwaves, amp="dur", ampk=20, base=60, mid=None):
    out = []
    for l in src.split("\n"):
        m = re.match(r"\s*;@T(\d+)(w?)", l)
        if m:
            k = int(m.group(1))
            if k == 0:
                out.append(f"    s_memrealtime s[{base}:{base+1}]")
            elif mid is not None and k == mid:
                out.append(f"    s_memrealtime s[{base+4}:{base+5}]")
            continue
        if l.strip() == "s_endpgm":
            o = out.append
            o("    s_waitcnt vmcnt(0)")
            o(f"    s_memrealtime s[{base+2}:{base+3}]")
            o("    s_load_dwordx2 s[52:53], s[0:1], 48")
            o("    s_waitcnt lgkmcnt(0)")
            o("    s_mov_b32 s54, 256")
            o("    s_mov_b32 s55, 0x20000")
            o("    s_mov_b64 exec, 1")
            o("    v_mov_b32 v1, 0")
            o(f"    s_not_b32 s57, s{base}")
            o("    v_mov_b32 v2, s57")
            o(f"    v_mov_b32 v3, s{base}")
            o(f"    s_not_b32 s57, s{base+2}")
            o("    v_mov_b32 v4, s57")
            o(f"    v_mov_b32 v5, s{base+2}")
            o(f"    s_not_b32 s57, s{base+4}")
            o("    v_mov_b32 v7, s57")
            o(f"    v_mov_b32 v8, s{base+4}")
            o("    v_mov_b32 v6, 1")
            o("    buffer_atomic_umax v2, v1, s[52:55], 0 offen offset:0 sc1")
            o("    buffer_atomic_umax v3, v1, s[52:55], 0 offen offset:4 sc1")
            o("    buffer_atomic_umax v4, v1, s[52:55], 0 offen offset:8 sc1")
            o("    buffer_atomic_umax v5, v1, s[52:55], 0 offen offset:12 sc1")
            if mid is not None:
                o("    buffer_atomic_umax v7, v1, s[52:55], 0 offen offset:20 sc1")
                o("    buffer_atomic_umax v8, v1, s[52:55], 0 offen offset:24 sc1")
            o("    s_waitcnt vmcnt(0)")
            o("    buffer_atomic_add v6, v1, s[52:55], 0 offen offset:16 sc0 sc1")
            o("    s_waitcnt vmcnt(0)")
            o("    v_readfirstlane_b32 s56, v6")
            o("    s_nop 3")
            o(f"    s_cmp_lg_u32 s56, {nwaves-1}")
            o("    s_cbranch_scc1 L_dbg_done")
            for i, off in enumerate([0, 4, 8, 12, 20, 24]):
                o(f"    v_mov_b32 v{2+i}, 0")
                o(f"    buffer_atomic_umax v{2+i}, v1, s[52:55], 0 offen offset:{off} sc0 sc1")
            o("    s_waitcnt vmcnt(0)")
            for i in range(6):
                o(f"    v_readfirstlane_b32 s{70+i}, v{2+i}")
            o("    s_nop 3")
            o("    s_not_b32 s70, s70")
            o("    s_not_b32 s72, s72")
            o("    s_not_b32 s74, s74")
            o("    s_sub_u32 s80, s71, s70")
            o("    s_sub_u32 s81, s72, s70")
            o("    s_sub_u32 s82, s73, s70")
            o("    s_sub_u32 s83, s74, s70")
            o("    s_sub_u32 s84, s75, s70")
            for i in range(5):
                o(f"    v_mov_b32 v2, s{80+i}")
                o(f"    buffer_store_dword v2, v1, s[52:55], 0 offen offset:{32+4*i}")
                o("    s_waitcnt vmcnt(0)")
            if amp:
                r = {"skew": 80, "first": 81, "dur": 82, "fmid": 83, "lmid": 84}[amp]
                o(f"    s_min_u32 s57, s{r}, 5000")
                o(f"    s_mul_i32 s57, s57, {ampk}")
                o("    s_memrealtime s[58:59]")
                o("    s_waitcnt lgkmcnt(0)")
                o("    s_mov_b32 s56, s58")
                o("L_spin:")
                o("    s_memrealtime s[58:59]")
                o("    s_waitcnt lgkmcnt(0)")
                o("    s_sub_u32 s58, s58, s56")
                o("    s_cmp_lt_u32 s58, s57")
                o("    s_cbranch_scc1 L_spin")
            o("L_dbg_done:")
            o("    s_endpgm")
            continue
        out.append(l)
    s = "\n".join(out)
    s = re.sub(r"next_free_sgpr \d+", "next_free_sgpr 102", s)
    return s
```

```python
from genC import gen
from instr import instrument_global
src = gen(4)
open("../var/g_none.s","w").write(instrument_global(src, 1024, amp=None, mid=5))
open("../var/g_dur.s","w").write(instrument_global(src, 1024, amp="dur", mid=5))
open("../var/g_skew.s","w").write(instrument_global(src, 1024, amp="skew", mid=5))
open("../var/g_first.s","w").write(instrument_global(src, 1024, amp="first", mid=5))
open("../var/g_fmid.s","w").write(instrument_global(src, 1024, amp="fmid", mid=5))
open("../var/g_lmid.s","w").write(instrument_global(src, 1024, amp="lmid", mid=5))
```

```python
import re
def instrument(src, wg=0, amp=None, ampk=20, base=60):
    n = 0
    out = []
    for l in src.split("\n"):
        m = re.match(r"\s*;@T(\d+)(w?)", l)
        if m:
            k = int(m.group(1)); n = max(n, k + 1)
            out.append(f"    s_memrealtime s[{base+4*k}:{base+4*k+1}]")
            out.append(f"    s_memtime s[{base+4*k+2}:{base+4*k+3}]")
            if m.group(2):
                out.append("    s_waitcnt lgkmcnt(0)")
            continue
        if l.strip() == "s_endpgm":
            k = n; n += 1
            out.append("    s_waitcnt vmcnt(0)")
            out.append(f"    s_memrealtime s[{base+4*k}:{base+4*k+1}]")
            out.append(f"    s_memtime s[{base+4*k+2}:{base+4*k+3}]")
            out.append("    s_load_dwordx2 s[52:53], s[0:1], 48")
            out.append("    s_waitcnt lgkmcnt(0)")
            out.append(f"    s_cmp_lg_u32 s2, {wg}")
            out.append("    s_cbranch_scc1 L_dbg_done")
            out.append("    v_readfirstlane_b32 s56, v0")
            out.append("    s_nop 3")
            out.append("    s_cmp_lg_u32 s56, 0")
            out.append("    s_cbranch_scc1 L_dbg_done")
            out.append("    s_mov_b32 s54, 256")
            out.append("    s_mov_b32 s55, 0x20000")
            out.append("    s_mov_b64 exec, 1")
            out.append("    v_mov_b32 v1, 0")
            for i in range(1, n):
                out.append(f"    s_sub_u32 s57, s{base+4*i}, s{base}")
                out.append(f"    v_mov_b32 v2, s57")
                out.append(f"    buffer_store_dword v2, v1, s[52:55], 0 offen offset:{4*(i-1)}")
                out.append(f"    s_sub_u32 s57, s{base+4*i+2}, s{base+2}")
                out.append(f"    v_mov_b32 v3, s57")
                out.append(f"    buffer_store_dword v3, v1, s[52:55], 0 offen offset:{32+4*(i-1)}")
                out.append("    s_waitcnt vmcnt(0)")
            if amp is not None:
                a0, a1 = amp
                out.append(f"    s_sub_u32 s57, s{base+4*a1}, s{base+4*a0}")
                out.append(f"    s_min_u32 s57, s57, 5000")
                out.append(f"    s_mul_i32 s57, s57, {ampk}")
                out.append("    s_memrealtime s[58:59]")
                out.append("    s_waitcnt lgkmcnt(0)")
                out.append("    s_mov_b32 s56, s58")
                out.append("L_spin:")
                out.append("    s_memrealtime s[58:59]")
                out.append("    s_waitcnt lgkmcnt(0)")
                out.append("    s_sub_u32 s58, s58, s56")
                out.append("    s_cmp_lt_u32 s58, s57")
                out.append("    s_cbranch_scc1 L_spin")
            out.append("L_dbg_done:")
            out.append("    s_endpgm")
            continue
        out.append(l)
    s = "\n".join(out)
    s = re.sub(r"next_free_sgpr \d+", "next_free_sgpr 102", s)
    return s

def instrument_global(src, nwaves, amp="dur", ampk=20, base=60, mid=None):
    out = []
    for l in src.split("\n"):
        m = re.match(r"\s*;@T(\d+)(w?)", l)
        if m:
            k = int(m.group(1))
            if k == 0:
                out.append(f"    s_memrealtime s[{base}:{base+1}]")
            elif mid is not None and k == mid:
                out.append(f"    s_memrealtime s[{base+4}:{base+5}]")
            continue
        if l.strip() == "s_endpgm":
            o = out.append
            o("    s_waitcnt vmcnt(0)")
            o(f"    s_memrealtime s[{base+2}:{base+3}]")
            o("    s_load_dwordx2 s[52:53], s[0:1], 48")
            o("    s_waitcnt lgkmcnt(0)")
            o("    s_mov_b32 s54, 256")
            o("    s_mov_b32 s55, 0x20000")
            o("    s_mov_b64 exec, 1")
            o("    v_mov_b32 v1, 0")
            o(f"    s_not_b32 s57, s{base}")
            o("    v_mov_b32 v2, s57")
            o(f"    v_mov_b32 v3, s{base}")
            o(f"    s_not_b32 s57, s{base+2}")
            o("    v_mov_b32 v4, s57")
            o(f"    v_mov_b32 v5, s{base+2}")
            o(f"    s_not_b32 s57, s{base+4}")
            o("    v_mov_b32 v7, s57")
            o(f"    v_mov_b32 v8, s{base+4}")
            o("    v_mov_b32 v6, 1")
            o("    buffer_atomic_umax v2, v1, s[52:55], 0 offen offset:0 sc1")
            o("    buffer_atomic_umax v3, v1, s[52:55], 0 offen offset:4 sc1")
            o("    buffer_atomic_umax v4, v1, s[52:55], 0 offen offset:8 sc1")
            o("    buffer_atomic_umax v5, v1, s[52:55], 0 offen offset:12 sc1")
            if mid is not None:
                o("    buffer_atomic_umax v7, v1, s[52:55], 0 offen offset:20 sc1")
                o("    buffer_atomic_umax v8, v1, s[52:55], 0 offen offset:24 sc1")
            o("    s_waitcnt vmcnt(0)")
            o("    buffer_atomic_add v6, v1, s[52:55], 0 offen offset:16 sc0 sc1")
            o("    s_waitcnt vmcnt(0)")
            o("    v_readfirstlane_b32 s56, v6")
            o("    s_nop 3")
            o(f"    s_cmp_lg_u32 s56, {nwaves-1}")
            o("    s_cbranch_scc1 L_dbg_done")
            for i, off in enumerate([0, 4, 8, 12, 20, 24]):
                o(f"    v_mov_b32 v{2+i}, 0")
                o(f"    buffer_atomic_umax v{2+i}, v1, s[52:55], 0 offen offset:{off} sc0 sc1")
            o("    s_waitcnt vmcnt(0)")
            for i in range(6):
                o(f"    v_readfirstlane_b32 s{70+i}, v{2+i}")
            o("    s_nop 3")
            o("    s_not_b32 s70, s70")
            o("    s_not_b32 s72, s72")
            o("    s_not_b32 s74, s74")
            o("    s_sub_u32 s80, s71, s70")
            o("    s_sub_u32 s81, s72, s70")
            o("    s_sub_u32 s82, s73, s70")
            o("    s_sub_u32 s83, s74, s70")
            o("    s_sub_u32 s84, s75, s70")
            for i in range(5):
                o(f"    v_mov_b32 v2, s{80+i}")
                o(f"    buffer_store_dword v2, v1, s[52:55], 0 offen offset:{32+4*i}")
                o("    s_waitcnt vmcnt(0)")
            if amp:
                r = {"skew": 80, "first": 81, "dur": 82, "fmid": 83, "lmid": 84}[amp]
                o(f"    s_min_u32 s57, s{r}, 5000")
                o(f"    s_mul_i32 s57, s57, {ampk}")
                o("    s_memrealtime s[58:59]")
                o("    s_waitcnt lgkmcnt(0)")
                o("    s_mov_b32 s56, s58")
                o("L_spin:")
                o("    s_memrealtime s[58:59]")
                o("    s_waitcnt lgkmcnt(0)")
                o("    s_sub_u32 s58, s58, s56")
                o("    s_cmp_lt_u32 s58, s57")
                o("    s_cbranch_scc1 L_spin")
            o("L_dbg_done:")
            o("    s_endpgm")
            continue
        out.append(l)
    s = "\n".join(out)
    s = re.sub(r"next_free_sgpr \d+", "next_free_sgpr 102", s)
    return s

def instrument_ws(src, nwaves, wpb, amp="dur", ampk=20, base=60, mid=None, wait=3000):
    out = []
    sh = wpb.bit_length() - 1
    for l in src.split("\n"):
        m = re.match(r"\s*;@T(\d+)(w?)", l)
        if m:
            k = int(m.group(1))
            if k == 0:
                out.append(f"    s_memrealtime s[{base}:{base+1}]")
                out.append(f"    v_readfirstlane_b32 s92, v0")
                out.append(f"    s_mov_b32 s93, s2")
            elif mid is not None and k == mid:
                out.append(f"    s_memrealtime s[{base+4}:{base+5}]")
            continue
        if l.strip() == "s_endpgm":
            o = out.append
            o("    s_waitcnt vmcnt(0)")
            o(f"    s_memrealtime s[{base+2}:{base+3}]")
            o("    s_load_dwordx4 s[96:99], s[0:1], 48")
            o("    s_waitcnt lgkmcnt(0)")
            o("    s_mov_b32 s52, s96")
            o("    s_mov_b32 s53, s97")
            o("    s_mov_b32 s54, 256")
            o("    s_mov_b32 s55, 0x20000")
            o("    s_mov_b32 s48, s98")
            o("    s_mov_b32 s49, s99")
            o("    s_mov_b32 s50, 0x100000")
            o("    s_mov_b32 s51, 0x20000")
            o("    s_lshr_b32 s92, s92, 6")
            o(f"    s_mul_i32 s93, s93, {wpb}")
            o("    s_add_u32 s92, s92, s93")
            o("    s_lshl_b32 s93, s92, 4")
            o("    s_mov_b64 exec, 1")
            o("    v_mov_b32 v1, s93")
            o(f"    v_mov_b32 v4, s{base}")
            o(f"    v_mov_b32 v5, s{base+4}")
            o(f"    v_mov_b32 v6, s{base+2}")
            o(f"    v_mov_b32 v7, 0")
            o("    buffer_store_dwordx4 v[4:7], v1, s[48:51], 0 offen sc0 sc1")
            o("    s_cmp_lg_u32 s92, 0")
            o("    s_cbranch_scc1 L_dbg_done")
            o("    s_mov_b64 exec, -1")
            o("L_wait:")
            o("    s_memrealtime s[58:59]")
            o("    s_waitcnt lgkmcnt(0)")
            o(f"    s_sub_u32 s58, s58, s{base}")
            o(f"    s_cmp_lt_u32 s58, {wait}")
            o("    s_cbranch_scc1 L_wait")
            o(f"    s_sub_u32 s57, s{base}, 2000")
            o("    v_mbcnt_lo_u32_b32 v1, -1, 0")
            o("    v_mbcnt_hi_u32_b32 v1, -1, v1")
            o("    v_lshlrev_b32 v1, 4, v1")
            for i in range(3):
                o(f"    v_mov_b32 v{8+2*i}, -1")
                o(f"    v_mov_b32 v{9+2*i}, 0")
            o("    s_mov_b32 s56, 0")
            o("L_rd:")
            o("    buffer_load_dwordx4 v[4:7], v1, s[48:51], s56 offen sc0 sc1")
            o("    s_waitcnt vmcnt(0)")
            for i in range(3):
                o(f"    v_subrev_u32 v{4+i}, s57, v{4+i}")
                o(f"    v_min_u32 v{8+2*i}, v{8+2*i}, v{4+i}")
                o(f"    v_max_u32 v{9+2*i}, v{9+2*i}, v{4+i}")
            o("    s_add_u32 s56, s56, 1024")
            o(f"    s_cmp_lt_u32 s56, {nwaves*16}")
            o("    s_cbranch_scc1 L_rd")
            for i in range(3):
                o(f"    s_mov_b32 s{70+2*i}, -1")
                o(f"    s_mov_b32 s{71+2*i}, 0")
            o("    s_mov_b32 s56, 0")
            o("L_ln:")
            for i in range(3):
                o(f"    v_readlane_b32 s58, v{8+2*i}, s56")
                o(f"    v_readlane_b32 s59, v{9+2*i}, s56")
                o("    s_nop 3")
                o(f"    s_min_u32 s{70+2*i}, s{70+2*i}, s58")
                o(f"    s_max_u32 s{71+2*i}, s{71+2*i}, s59")
            o("    s_add_u32 s56, s56, 1")
            o("    s_cmp_lt_u32 s56, 64")
            o("    s_cbranch_scc1 L_ln")
            o("    s_sub_u32 s80, s71, s70")
            o("    s_sub_u32 s81, s74, s70")
            o("    s_sub_u32 s82, s75, s70")
            o("    s_sub_u32 s83, s72, s70")
            o("    s_sub_u32 s84, s73, s70")
            o("    s_sub_u32 s85, 2000, s70")
            o("    s_mov_b64 exec, 1")
            o("    v_mov_b32 v1, 0")
            for i in range(6):
                o(f"    v_mov_b32 v2, s{80+i}")
                o(f"    buffer_store_dword v2, v1, s[52:55], 0 offen offset:{4*i}")
                o("    s_waitcnt vmcnt(0)")
            if amp:
                r = {"skew": 80, "first": 81, "dur": 82, "fmid": 83, "lmid": 84, "w0": 85}[amp]
                o(f"    s_min_u32 s57, s{r}, 5000")
                o(f"    s_mul_i32 s57, s57, {ampk}")
                o("    s_memrealtime s[58:59]")
                o("    s_waitcnt lgkmcnt(0)")
                o("    s_mov_b32 s56, s58")
                o("L_spin:")
                o("    s_memrealtime s[58:59]")
                o("    s_waitcnt lgkmcnt(0)")
                o("    s_sub_u32 s58, s58, s56")
                o("    s_cmp_lt_u32 s58, s57")
                o("    s_cbranch_scc1 L_spin")
            o("L_dbg_done:")
            o("    s_endpgm")
            continue
        out.append(l)
    s = "\n".join(out)
    s = re.sub(r"next_free_sgpr \d+", "next_free_sgpr 102", s)
    return s
```

```python
from genC import gen
from instr import instrument_ws
src = gen(4)
for a in [None, "dur", "skew", "first", "fmid", "lmid"]:
    open(f"../var/w_{a}.s","w").write(instrument_ws(src, 1024, 4, amp=a, mid=5))
```

```python
from genC import gen
from common import *
import re
def probe(ptr_off, ampk=10, nbytes=NBYTES, stride=450560, n=16, amp=True, store=False):
    src = gen(4)
    pre = f"""
    s_memrealtime s[60:61]
    s_load_dwordx2 s[64:65], s[0:1], {ptr_off}
    v_readfirstlane_b32 s92, v0
    s_mov_b32 s66, {nbytes}
    s_mov_b32 s67, 0x20000
    s_mov_b32 s70, 0
    s_waitcnt lgkmcnt(0)
    s_or_b32 s92, s92, s2
    s_cmp_lg_u32 s92, 0
    s_cbranch_scc1 L_hold
    v_mov_b32 v1, 0
    s_mov_b32 s68, 4096
    s_memrealtime s[72:73]
    s_waitcnt lgkmcnt(0)
L_chain:
    buffer_load_dword v2, v1, s[64:67], s68 offen
    s_waitcnt vmcnt(0)
    s_add_u32 s68, s68, {stride}
    s_cmp_lt_u32 s68, {4096 + stride*n}
    s_cbranch_scc1 L_chain
    s_memrealtime s[74:75]
    s_waitcnt lgkmcnt(0)
    s_sub_u32 s70, s74, s72
L_hold:
    s_memrealtime s[62:63]
    s_waitcnt lgkmcnt(0)
    s_sub_u32 s62, s62, s60
    s_cmp_lt_u32 s62, 2000
    s_cbranch_scc1 L_hold
"""
    post = f"""
    s_cmp_lg_u32 s92, 0
    s_cbranch_scc1 L_done
    s_load_dwordx2 s[52:53], s[0:1], 48
    s_mov_b32 s54, 256
    s_mov_b32 s55, 0x20000
    s_waitcnt lgkmcnt(0)
    s_mov_b64 exec, 1
    v_mov_b32 v1, 0
    v_mov_b32 v2, s70
    buffer_store_dword v2, v1, s[52:55], 0 offen
    s_min_u32 s57, s70, 5000
    s_mul_i32 s57, s57, {ampk if amp else 0}
    s_memrealtime s[58:59]
    s_waitcnt lgkmcnt(0)
    s_mov_b32 s56, s58
L_spin:
    s_memrealtime s[58:59]
    s_waitcnt lgkmcnt(0)
    s_sub_u32 s58, s58, s56
    s_cmp_lt_u32 s58, s57
    s_cbranch_scc1 L_spin
L_done:
    s_endpgm
"""
    src = src.replace("    ;@T0\n", pre).replace("    s_endpgm\n", post)
    src = re.sub(r"next_free_sgpr \d+", "next_free_sgpr 102", src)
    return src
if __name__ == "__main__":
    n = []
    for nm, off, kw in [("none", 0, dict(amp=False)), ("x", 0, {}), ("f", 8, {}), ("o", 40, {}), ("ws", 56, dict(nbytes=1<<28, stride=16<<20)), ("wsend", 56, dict(nbytes=1<<28, stride=450560))]:
        open(f"../var/pr_{nm}.s", "w").write(probe(off, **kw))
        n.append(f"var/pr_{nm}.s")
    print(" ".join(n))
```

```python
import struct, subprocess, re, tempfile
from common import *

def f32(x):
    return "0x%08x" % struct.unpack("<I", struct.pack("<f", x))[0]

def offsets(txt):
    lines = txt.split("\n")
    probe = ".amdgcn_target \"amdgcn-amd-amdhsa--gfx950\"\n.text\n" + "\n".join((f"P{i}:\n" + l) for i, l in enumerate(lines)) + "\n"
    d = tempfile.mkdtemp()
    open(d + "/p.s", "w").write(probe)
    subprocess.run(["clang", "-x", "assembler", "-target", "amdgcn-amd-amdhsa", "-mcpu=gfx950", "-c", d + "/p.s", "-o", d + "/p.o"], check=True)
    out = subprocess.run(["llvm-readelf", "-s", d + "/p.o"], capture_output=True, text=True).stdout
    off = {}
    for l in out.splitlines():
        m = re.search(r":\s+([0-9a-f]{16})\s.*\sP(\d+)$", l)
        if m: off[int(m.group(2))] = int(m.group(1), 16)
    return off

def gen(ld="nt", st="", bar=7, gbpos=0, touch=False, prio2=0, glob=False, wpb=4, shift=True, halffirst=False, alpha_imm=False, xcd=False, aearly=False):
    a = Asm()
    block = 64 * wpb
    grid = ROWS // 4 // wpb
    X, F, Y, G, B = 4, 18, 32, 60, 88
    AA, A1, CK, S, Q = 116, 118, 120, 124, 126
    GR, GU = Y, Y + 8
    a(";@T0")
    if glob:
        a("s_load_dwordx4 s[4:7], s[0:1], 0")
    else:
        a("s_load_dwordx2 s[4:5], s[0:1], 0")
        a("s_load_dwordx2 s[8:9], s[0:1], 8")
    def rest_kernarg():
        a("s_load_dwordx2 s[12:13], s[0:1], 16")
        a("s_load_dwordx2 s[16:17], s[0:1], 24")
        if not alpha_imm: a("s_load_dwordx2 s[24:25], s[0:1], 32")
        a("s_load_dwordx2 s[20:21], s[0:1], 40")
    if not glob: rest_kernarg()
    if xcd:
        a(f"s_and_b32 s3, s2, 7\ns_lshr_b32 s33, s2, 3\ns_mul_i32 s3, s3, {grid//8}\ns_add_u32 s3, s3, s33\ns_mul_i32 s3, s3, {4*wpb*ROWB}")
    else:
        a(f"s_mul_i32 s3, s2, {4*wpb*ROWB}")
    a(f"""
    v_lshrrev_b32 v1, 4, v0
    v_and_b32 v2, 15, v0
    v_mul_u32_u24 v1, {ROWB}, v1
    v_and_b32 v3, 63, v0
    v_add_u32 v1, s3, v1
    v_and_b32 v{CK+2}, 3, v0
    v_lshlrev_b32 v3, 4, v3
    s_mov_b32 s22, {NBYTES}
    s_mov_b32 s23, 0x20000
    v_lshl_add_u32 v0, v2, 3, v1
    v_lshl_add_u32 v1, v2, 4, v1
    """)
    if not glob:
        a("s_mov_b64 s[10:11], s[22:23]\ns_mov_b64 s[6:7], s[22:23]")
    a(f"""
    s_movk_i32 s14, {ROWB}
    s_mov_b32 s15, s23
    s_mov_b64 s[18:19], s[14:15]
    s_movk_i32 s28, 0x3f80
    s_mov_b32 s29, 0
    s_mov_b32 s27, 0
    """)
    if glob or xcd:
        a(f"s_cmpk_ge_u32 s2, {grid}\ns_cbranch_scc1 L_end")
    if touch or prio2:
        a(f"s_cmpk_ge_u32 s2, 256")
        if prio2: a("s_cselect_b32 s33, 1, 0")
    if touch:
        a("s_cbranch_scc1 L_touch\nL_back:")
    a("s_waitcnt lgkmcnt(0)")
    a(";@T1")
    def gbloads():
        a(f"buffer_load_dwordx4 v[{GR}:{GR+3}], v3, s[12:15], 0 offen")
        a(f"buffer_load_dwordx4 v[{GR+4}:{GR+7}], v3, s[16:19], 0 offen")
    def ldpair(j):
        if glob:
            if j < 3:
                a(f"global_load_dwordx4 v[{X+4*j}:{X+4*j+3}], v1, s[4:5] offset:{256*j} {ld}")
                a(f"global_load_dwordx4 v[{F+4*j}:{F+4*j+3}], v1, s[6:7] offset:{256*j} {ld}")
            else:
                a(f"global_load_dwordx2 v[{X+12}:{X+13}], v0, s[4:5] offset:768 {ld}")
                a(f"global_load_dwordx2 v[{F+12}:{F+13}], v0, s[6:7] offset:768 {ld}")
        elif j < 3:
            a(f"buffer_load_dwordx4 v[{X+4*j}:{X+4*j+3}], v1, s[4:7], 0 offen offset:{256*j} {ld}")
            a(f"buffer_load_dwordx4 v[{F+4*j}:{F+4*j+3}], v1, s[8:11], 0 offen offset:{256*j} {ld}")
        else:
            a(f"buffer_load_dwordx2 v[{X+12}:{X+13}], v0, s[4:7], 0 offen offset:768 {ld}")
            a(f"buffer_load_dwordx2 v[{F+12}:{F+13}], v0, s[8:11], 0 offen offset:768 {ld}")
    if glob:
        assert gbpos >= 1
    if aearly: a("s_load_dword s26, s[24:25], 0")
    if gbpos == 0: gbloads()
    for j in range(4):
        ldpair(j)
        if glob and j == 0:
            rest_kernarg()
        if j < 3 and bar >> j & 1: a("s_barrier")
        if j + 1 == gbpos:
            if glob: a("s_waitcnt lgkmcnt(0)")
            gbloads()
    if alpha_imm:
        a("s_movk_i32 s26, 0x4000")
    elif not aearly:
        a("s_load_dword s26, s[24:25], 0")
    a(f"""
    s_mov_b32 s30, 0xffff0000
    v_lshlrev_b32 v3, 1, v3
    v_lshlrev_b32 v{CK+2}, 4, v{CK+2}
    v_lshlrev_b32 v{CK}, 5, v2
    v_lshlrev_b32 v{CK+1}, 4, v2
    v_lshlrev_b64 v[{A1}:{A1+1}], v{CK+2}, s[28:29]
    v_mov_b32 v2, {f32(1e-5)}
    s_mov_b32 s28, {f32(1.0/448)}
    """)
    if prio2:
        a(f"s_cmp_eq_u32 s33, 0\ns_cbranch_scc1 L_np\ns_setprio {prio2}\nL_np:")
    a(f"s_waitcnt vmcnt({8-2*gbpos})")
    for k in range(8):
        a(f"v_lshlrev_b32 v{GU+2*k}, 16, v{GR+k}")
        a(f"v_and_b32 v{GU+2*k+1}, s30, v{GR+k}")
    a(f"""
    s_nop 0
    ds_write_b128 v3, v[{GU}:{GU+3}]
    ds_write_b128 v3, v[{GU+4}:{GU+7}] offset:16
    ds_write_b128 v3, v[{GU+8}:{GU+11}] offset:2048
    ds_write_b128 v3, v[{GU+12}:{GU+15}] offset:2064
    s_waitcnt lgkmcnt(0)
    s_lshl_b32 s31, s26, 16
    s_lshr_b32 s26, s31, 16
    s_cmp_eq_u32 0, 1
    """)
    for j in range(3):
        a(f"ds_read_b128 v[{G+8*j}:{G+8*j+3}], v{CK} offset:{512*j}")
        a(f"ds_read_b128 v[{G+8*j+4}:{G+8*j+7}], v{CK} offset:{512*j+16}")
        a(f"ds_read_b128 v[{B+8*j}:{B+8*j+3}], v{CK} offset:{2048+512*j}")
        a(f"ds_read_b128 v[{B+8*j+4}:{B+8*j+7}], v{CK} offset:{2048+512*j+16}")
    a(f"ds_read_b128 v[{G+24}:{G+27}], v{CK+1} offset:1536")
    a(f"ds_read_b128 v[{B+24}:{B+27}], v{CK+1} offset:{2048+1536}")
    a(f"v_lshlrev_b64 v[{AA}:{AA+1}], v{CK+2}, s[26:27]")
    yp = lambda i: f"v[{Y+2*i}:{Y+2*i+1}]"
    y4 = lambda h: f"v[{Y+4*h}:{Y+4*h+3}]"
    C0 = f"v[{CK}:{CK+3}]" if shift else "0"
    MX = lambda h: f"v_mfma_f32_4x4x4_16b_bf16 {y4(h)}, v[{AA}:{AA+1}], v[{X+2*h}:{X+2*h+1}], {C0}"
    MF = lambda h: f"v_mfma_f32_4x4x4_16b_bf16 {y4(h)}, v[{A1}:{A1+1}], v[{F+2*h}:{F+2*h+1}], {y4(h)}"
    def aops(h):
        r = []
        for e in range(4):
            y = Y + 4*h + e
            r.append(f"v_add_f32{{}} v{S+(e&1)}, v{S+(e&1)}, v{y}")
            r.append(f"v_fmac_f32{{}} v{Q+(e&1)}, v{y}, v{y}")
        return r
    def pkacc(h):
        for i in (2*h, 2*h+1):
            a(f"v_pk_add_f32 v[{S}:{S+1}], v[{S}:{S+1}], {yp(i)}")
            a(f"v_pk_fma_f32 v[{Q}:{Q+1}], {yp(i)}, {yp(i)}, v[{Q}:{Q+1}]")
    a("s_waitcnt vmcnt(6)")
    a(";@R")
    if shift:
        a(f"v_lshlrev_b32 v{S}, 16, v{X}")
        a(f"v_lshlrev_b32_e64 v{S+1}, 16, v{F}")
        a(f"v_fma_f32 v{S}, -s31, v{S}, -v{S+1}")
        a("s_nop 0\ns_nop 0")
        for k in range(4):
            a(f"v_mov_b32_dpp v{CK+k}, v{S} row_newbcast:0 row_mask:0xf bank_mask:0xf")
        a("s_nop 0\ns_nop 0")
    else:
        a("s_nop 0")
    a(MX(0)); a(MX(1)); a("s_nop 0\ns_nop 0"); a(MF(0)); a(MF(1))
    a("s_nop 1\ns_nop 1")
    a(f"v_pk_add_f32 v[{S}:{S+1}], {yp(0)}, {yp(1)}")
    a(f"v_pk_mul_f32 v[{Q}:{Q+1}], {yp(0)}, {yp(0)}")
    a(f"v_pk_fma_f32 v[{Q}:{Q+1}], {yp(1)}, {yp(1)}, v[{Q}:{Q+1}]")
    for c in (1, 2):
        ops = aops(2*c - 1)
        a(f"s_waitcnt vmcnt({6-2*c})")
        a(";@R")
        a(ops[0].format(""))
        a(MX(2*c)); a(ops[1].format("_e64")); a(MX(2*c+1)); a(ops[2].format("_e64"))
        a(MF(2*c)); a(ops[3].format("_e64")); a(MF(2*c+1))
        for o in ops[4:]: a(o.format(""))
        pkacc(2*c)
    ops = aops(5)
    a("s_waitcnt vmcnt(0)")
    a(";@R")
    a(ops[0].format(""))
    a(MX(6)); a(ops[1].format("")); a(ops[2].format("")); a(MF(6))
    for o in ops[3:7]: a(o.format(""))
    a(ops[7].format("_e64"))
    pkacc(6)
    mods = ["quad_perm:[1,0,3,2]", "quad_perm:[2,3,0,1]", "row_half_mirror", "row_mirror"]
    a(f"v_add_f32 v{S}, v{S}, v{S+1}")
    a(f"v_add_f32 v{Q}, v{Q}, v{Q+1}")
    for n, m in enumerate(mods):
        a("v_nop_e64 ;@FILL")
        a(f"v_add_f32_dpp v{S}, v{S}, v{S} {m} row_mask:0xf bank_mask:0xf")
        a(f"v_add_f32_dpp v{Q}, v{Q}, v{Q} {m} row_mask:0xf bank_mask:0xf")
    a(f"v_mul_f32_e64 v{S}, s28, v{S}")
    a(f"v_fma_f32 v{Q}, v{Q}, s28, v2")
    a(f"v_fma_f32 v{Q}, -v{S}, v{S}, v{Q}")
    if not shift: a(f"v_max_f32_e64 v{Q}, v{Q}, v2")
    a(f"v_rsq_f32 v{Q}, v{Q}")
    a("s_waitcnt lgkmcnt(0)")
    a(f"v_mul_f32 v{Q+1}, -v{S}, v{Q}")
    for j in ([3, 0, 1, 2] if halffirst else [0, 1, 2, 3]):
        n = 4 if j < 3 else 2
        for k in range(n):
            i = 4*j+k
            a(f"v_pk_fma_f32 {yp(i)}, {yp(i)}, v[{Q}:{Q+1}], v[{Q}:{Q+1}] op_sel:[0,0,1] op_sel_hi:[1,0,1]")
        for k in range(n):
            i = 4*j+k
            a(f"v_pk_fma_f32 {yp(i)}, {yp(i)}, v[{G+2*i}:{G+2*i+1}], v[{B+2*i}:{B+2*i+1}]")
        for k in range(n):
            i = 4*j+k
            a(f"v_cvt_pk_bf16_f32 v{X+i}, v{Y+2*i}, v{Y+2*i+1}")
        if j < 3:
            a(f"buffer_store_dwordx4 v[{X+4*j}:{X+4*j+3}], v1, s[20:23], 0 offen offset:{256*j} {st}")
        else:
            a(f"buffer_store_dwordx2 v[{X+12}:{X+13}], v0, s[20:23], 0 offen offset:768 {st}")
    a(";@E")
    if glob or xcd: a("L_end:")
    a("s_endpgm")
    txt = a.text()
    if touch:
        t2 = txt.replace("L_touch\n", "L_back\n")
        off = offsets(t2)
        lines = txt.split("\n")
        cand = [i for i, l in enumerate(lines) if off[i] >= 1088 and off[i] % 8 == 0]
        i = cand[0]
        lines[i:i] = ["L_touch:", "    s_cbranch_scc1 L_back", "    s_nop 0"]
        txt = "\n".join(lines)
    s = wrap(txt, grid, block, 4096, 128, 40, "layout D, MFMA widening")
    s = s.replace(".text\n", ".text\n.p2align 12\n")
    return s

if __name__ == "__main__":
    import sol
    n = []
    def em(nm, s):
        open(f"../var/{nm}.s", "w").write(s); n.append(f"var/{nm}.s")
    em("S_base", gen())
    em("S_gb1", gen(gbpos=1))
    em("S_gb2", gen(gbpos=2))
    em("S_t", gen(touch=True))
    em("S_tp", gen(touch=True, prio2=1))
    em("S_p", gen(prio2=1))
    em("S_glob", gen(glob=True, gbpos=1))
    em("S_b3", gen(bar=3))
    em("S_b6", gen(bar=6))
    em("S_b2", gen(bar=2))
    em("S_hf", gen(halffirst=True))
    em("S_ai", gen(alpha_imm=True))
    em("S_xcd", gen(xcd=True))
    em("S_w2", gen(wpb=2))
    em("s_A4w8", sol.gen(xcd=True, ld="nt", lay="A", R=4, wpb=8, order="wgil")[0])
    print(" ".join(n))
```

```python
import struct
from common import *
from genS import f32, offsets

def gen(ld="nt", st="", rounds=2, split=True, shift=True, halffirst=False, alpha_imm=False, xcd=True, prio2=0, late_fill=True, g2first=False, aearly=True, avec=False):
    a = Asm()
    wpb = 8
    block = 64 * wpb
    grid = ROWS // 4 // wpb
    X, F, Y, G, B = 4, 18, 32, 60, 88
    AA, A1, CK, S, Q = 116, 118, 120, 124, 126
    GR, GU = Y, Y + 8
    a(";@T0")
    a("s_load_dwordx2 s[4:5], s[0:1], 0")
    a("s_load_dwordx2 s[8:9], s[0:1], 8")
    if split:
        a("s_load_dwordx4 s[16:19], s[0:1], 16")
    else:
        a("s_load_dwordx2 s[12:13], s[0:1], 16")
        a("s_load_dwordx2 s[16:17], s[0:1], 24")
    if not alpha_imm: a("s_load_dwordx2 s[24:25], s[0:1], 32")
    a("s_load_dwordx2 s[20:21], s[0:1], 40")
    a("v_readfirstlane_b32 s32, v0")
    if xcd:
        a(f"s_and_b32 s3, s2, 7\ns_lshr_b32 s33, s2, 3\ns_lshl_b32 s3, s3, 5\ns_add_u32 s3, s3, s33\ns_mul_i32 s3, s3, {4*wpb*ROWB}")
    else:
        a(f"s_mul_i32 s3, s2, {4*wpb*ROWB}")
    a(f"""
    v_lshrrev_b32 v1, 4, v0
    v_and_b32 v2, 15, v0
    v_mul_u32_u24 v1, {ROWB}, v1
    v_and_b32 v3, 63, v0
    v_add_u32 v1, s3, v1
    v_and_b32 v{CK+2}, 3, v0
    v_lshlrev_b32 v3, 4, v3
    s_mov_b32 s22, {NBYTES}
    s_mov_b32 s23, 0x20000
    v_lshl_add_u32 v0, v2, 3, v1
    v_lshl_add_u32 v1, v2, 4, v1
    s_mov_b64 s[10:11], s[22:23]
    s_mov_b64 s[6:7], s[22:23]
    s_movk_i32 s14, {ROWB}
    s_mov_b32 s15, s23
    """)
    if not split: a("s_mov_b64 s[18:19], s[14:15]")
    a(f"""
    s_movk_i32 s28, 0x3f80
    s_mov_b32 s29, 0
    {"s_mov_b32 s27, s23" if avec else "s_mov_b32 s27, 0"}
    v_lshlrev_b32 v{CK+2}, 4, v{CK+2}
    v_lshlrev_b32 v{CK}, 5, v2
    v_lshlrev_b32 v{CK+1}, 4, v2
    """)
    if avec: a(f"s_mov_b32 s26, 2\nv_mov_b32 v{AA+1}, 0")
    if xcd:
        a(f"s_cmpk_ge_u32 s2, {grid}\ns_cbranch_scc1 L_end")
    a("s_cmpk_ge_u32 s32, 256")
    a("s_cbranch_scc1 L_g2")
    if split: a("s_bitcmp1_b32 s32, 6")
    a("s_waitcnt lgkmcnt(0)")
    a(";@T1")
    def ldpair(j):
        if j < 3:
            a(f"buffer_load_dwordx4 v[{X+4*j}:{X+4*j+3}], v1, s[4:7], 0 offen offset:{256*j} {ld}")
            a(f"buffer_load_dwordx4 v[{F+4*j}:{F+4*j+3}], v1, s[8:11], 0 offen offset:{256*j} {ld}")
        else:
            a(f"buffer_load_dwordx2 v[{X+12}:{X+13}], v0, s[4:7], 0 offen offset:768 {ld}")
            a(f"buffer_load_dwordx2 v[{F+12}:{F+13}], v0, s[8:11], 0 offen offset:768 {ld}")
    def issue(last_bar):
        nb = 0
        for j in range(4):
            ldpair(j)
            if (rounds == 4 or (rounds == 2 and j & 1) or (rounds == 1 and j == 3)) and (j < 3 or last_bar):
                a("s_barrier"); nb += 1
        return nb
    def alpha():
        if avec: return
        if alpha_imm: a("s_movk_i32 s26, 0x4000")
        else: a("s_load_dword s26, s[24:25], 0")
    if aearly: alpha()
    if split:
        a("s_cselect_b64 s[12:13], s[18:19], s[16:17]")
        a("s_cselect_b32 s33, 2048, 0")
        a(f"buffer_load_dwordx4 v[{GR}:{GR+3}], v3, s[12:15], 0 offen")
    else:
        a(f"buffer_load_dwordx4 v[{GR}:{GR+3}], v3, s[12:15], 0 offen")
        a(f"buffer_load_dwordx4 v[{GR+4}:{GR+7}], v3, s[16:19], 0 offen")
    if avec: a(f"buffer_load_ushort v{AA}, off, s[24:27], 0")
    nb = issue(True)
    if not aearly: alpha()
    a("s_mov_b32 s30, 0xffff0000")
    if split: a("v_lshl_add_u32 v3, v3, 1, s33")
    else: a("v_lshlrev_b32 v3, 1, v3")
    if late_fill:
        for i in range(nb - 1): a("s_barrier")
    a("s_waitcnt vmcnt(8)")
    for k in range(4 if split else 8):
        a(f"v_lshlrev_b32 v{GU+2*k}, 16, v{GR+k}")
        a(f"v_and_b32 v{GU+2*k+1}, s30, v{GR+k}")
    a(f"ds_write_b128 v3, v[{GU}:{GU+3}]")
    a(f"ds_write_b128 v3, v[{GU+4}:{GU+7}] offset:16")
    if not split:
        a(f"ds_write_b128 v3, v[{GU+8}:{GU+11}] offset:2048")
        a(f"ds_write_b128 v3, v[{GU+12}:{GU+15}] offset:2064")
    if avec: a(f"ds_write_b32 v{CK+1}, v{AA} offset:4096")
    if not late_fill:
        for i in range(nb - 1): a("s_barrier")
    a("s_branch L_join")
    a("L_g2:")
    a("s_waitcnt lgkmcnt(0)")
    a(";@T1")
    if aearly: alpha()
    for i in range(nb): a("s_barrier")
    issue(False)
    if not aearly: alpha()
    if prio2: a(f"s_setprio {prio2}")
    a("L_join:")
    a(f"""
    v_lshlrev_b64 v[{A1}:{A1+1}], v{CK+2}, s[28:29]
    v_mov_b32 v2, {f32(1e-5)}
    s_mov_b32 s28, {f32(1.0/448)}
    s_waitcnt lgkmcnt(0)
    s_barrier
    """)
    if avec: a(f"ds_read_b32 v{AA}, v{CK+1} offset:4096")
    else: a("s_lshl_b32 s31, s26, 16\ns_lshr_b32 s26, s31, 16")
    for j in range(3):
        a(f"ds_read_b128 v[{G+8*j}:{G+8*j+3}], v{CK} offset:{512*j}")
        a(f"ds_read_b128 v[{G+8*j+4}:{G+8*j+7}], v{CK} offset:{512*j+16}")
        a(f"ds_read_b128 v[{B+8*j}:{B+8*j+3}], v{CK} offset:{2048+512*j}")
        a(f"ds_read_b128 v[{B+8*j+4}:{B+8*j+7}], v{CK} offset:{2048+512*j+16}")
    a(f"ds_read_b128 v[{G+24}:{G+27}], v{CK+1} offset:1536")
    a(f"ds_read_b128 v[{B+24}:{B+27}], v{CK+1} offset:{2048+1536}")
    if avec:
        a(f"s_waitcnt lgkmcnt(14)\nv_lshlrev_b32 v3, 16, v{AA}\nv_lshlrev_b64 v[{AA}:{AA+1}], v{CK+2}, v[{AA}:{AA+1}]")
    else:
        a(f"v_lshlrev_b64 v[{AA}:{AA+1}], v{CK+2}, s[26:27]")
    main(a, X, F, Y, G, B, AA, A1, CK, S, Q, shift, halffirst, st, "v3" if avec else "s31")
    if xcd: a("L_end:")
    a("s_endpgm")
    txt = fix_align(a.text())
    s = wrap(txt, grid, block, 4352 if avec else 4096, 128, 40, "layout D, two generations, MFMA widening")
    s = s.replace(".text\n", ".text\n.p2align 12\n")
    return s

def fix_align(txt):
    lines = txt.split("\n")
    off = offsets(txt)
    for i, l in enumerate(lines):
        if l.strip() == "L_join:" and off[i] % 8:
            lines[i:i] = ["    s_nop 0"]
            break
    return "\n".join(lines)

def main(a, X, F, Y, G, B, AA, A1, CK, S, Q, shift, halffirst, st, AL="s31"):
    yp = lambda i: f"v[{Y+2*i}:{Y+2*i+1}]"
    y4 = lambda h: f"v[{Y+4*h}:{Y+4*h+3}]"
    C0 = f"v[{CK}:{CK+3}]" if shift else "0"
    MX = lambda h: f"v_mfma_f32_4x4x4_16b_bf16 {y4(h)}, v[{AA}:{AA+1}], v[{X+2*h}:{X+2*h+1}], {C0}"
    MF = lambda h: f"v_mfma_f32_4x4x4_16b_bf16 {y4(h)}, v[{A1}:{A1+1}], v[{F+2*h}:{F+2*h+1}], {y4(h)}"
    def aops(h):
        r = []
        for e in range(4):
            y = Y + 4*h + e
            r.append(f"v_add_f32{{}} v{S+(e&1)}, v{S+(e&1)}, v{y}")
            r.append(f"v_fmac_f32{{}} v{Q+(e&1)}, v{y}, v{y}")
        return r
    def pkacc(h):
        for i in (2*h, 2*h+1):
            a(f"v_pk_add_f32 v[{S}:{S+1}], v[{S}:{S+1}], {yp(i)}")
            a(f"v_pk_fma_f32 v[{Q}:{Q+1}], {yp(i)}, {yp(i)}, v[{Q}:{Q+1}]")
    a("s_waitcnt vmcnt(6)")
    a(";@R")
    if shift:
        a(f"v_lshlrev_b32 v{S}, 16, v{X}")
        a(f"v_lshlrev_b32_e64 v{S+1}, 16, v{F}")
        a(f"v_fma_f32 v{S}, -{AL}, v{S}, -v{S+1}")
        a("s_nop 0\ns_nop 0")
        for k in range(4):
            a(f"v_mov_b32_dpp v{CK+k}, v{S} row_newbcast:0 row_mask:0xf bank_mask:0xf")
        a("s_nop 0\ns_nop 0")
    else:
        a("s_nop 0")
    a(MX(0)); a(MX(1)); a("s_nop 0\ns_nop 0"); a(MF(0)); a(MF(1))
    a("s_nop 1\ns_nop 1")
    a(f"v_pk_add_f32 v[{S}:{S+1}], {yp(0)}, {yp(1)}")
    a(f"v_pk_mul_f32 v[{Q}:{Q+1}], {yp(0)}, {yp(0)}")
    a(f"v_pk_fma_f32 v[{Q}:{Q+1}], {yp(1)}, {yp(1)}, v[{Q}:{Q+1}]")
    for c in (1, 2):
        ops = aops(2*c - 1)
        a(f"s_waitcnt vmcnt({6-2*c})")
        a(";@R")
        a(ops[0].format(""))
        a(MX(2*c)); a(ops[1].format("_e64")); a(MX(2*c+1)); a(ops[2].format("_e64"))
        a(MF(2*c)); a(ops[3].format("_e64")); a(MF(2*c+1))
        for o in ops[4:]: a(o.format(""))
        pkacc(2*c)
    ops = aops(5)
    a("s_waitcnt vmcnt(0)")
    a(";@R")
    a(ops[0].format(""))
    a(MX(6)); a(ops[1].format("")); a(ops[2].format("")); a(MF(6))
    for o in ops[3:7]: a(o.format(""))
    a(ops[7].format("_e64"))
    pkacc(6)
    mods = ["quad_perm:[1,0,3,2]", "quad_perm:[2,3,0,1]", "row_half_mirror", "row_mirror"]
    a(f"v_add_f32 v{S}, v{S}, v{S+1}")
    a(f"v_add_f32 v{Q}, v{Q}, v{Q+1}")
    for n, m in enumerate(mods):
        a("v_nop_e64")
        a(f"v_add_f32_dpp v{S}, v{S}, v{S} {m} row_mask:0xf bank_mask:0xf")
        a(f"v_add_f32_dpp v{Q}, v{Q}, v{Q} {m} row_mask:0xf bank_mask:0xf")
    a(f"v_mul_f32_e64 v{S}, s28, v{S}")
    a(f"v_fma_f32 v{Q}, v{Q}, s28, v2")
    a(f"v_fma_f32 v{Q}, -v{S}, v{S}, v{Q}")
    if not shift: a(f"v_max_f32_e64 v{Q}, v{Q}, v2")
    a(f"v_rsq_f32 v{Q}, v{Q}")
    a("s_waitcnt lgkmcnt(0)")
    a(f"v_mul_f32 v{Q+1}, -v{S}, v{Q}")
    for j in ([3, 0, 1, 2] if halffirst else [0, 1, 2, 3]):
        n = 4 if j < 3 else 2
        for k in range(n):
            i = 4*j+k
            a(f"v_pk_fma_f32 {yp(i)}, {yp(i)}, v[{Q}:{Q+1}], v[{Q}:{Q+1}] op_sel:[0,0,1] op_sel_hi:[1,0,1]")
        for k in range(n):
            i = 4*j+k
            a(f"v_pk_fma_f32 {yp(i)}, {yp(i)}, v[{G+2*i}:{G+2*i+1}], v[{B+2*i}:{B+2*i+1}]")
        for k in range(n):
            i = 4*j+k
            a(f"v_cvt_pk_bf16_f32 v{X+i}, v{Y+2*i}, v{Y+2*i+1}")
        if j < 3:
            a(f"buffer_store_dwordx4 v[{X+4*j}:{X+4*j+3}], v1, s[20:23], 0 offen offset:{256*j} {st}")
        else:
            a(f"buffer_store_dwordx2 v[{X+12}:{X+13}], v0, s[20:23], 0 offen offset:768 {st}")
    a(";@E")

if __name__ == "__main__":
    import sol, genS
    n = []
    def em(nm, s):
        open(f"../var/{nm}.s", "w").write(s); n.append(f"var/{nm}.s")
    em("T_r2", gen())
    em("T_r2_ai", gen(alpha_imm=True))
    em("T_r2_av", gen(avec=True))
    em("T_r2_av_hf", gen(avec=True, halffirst=True))
    em("T_r2_av_lin", gen(avec=True, xcd=False))
    em("T_r2_av_ef", gen(avec=True, late_fill=False))
    em("T_r4_av", gen(avec=True, rounds=4))
    em("T_r1_av", gen(avec=True, rounds=1))
    em("T_r2_av_p", gen(avec=True, prio2=1))
    em("T_r2_ai_hf", gen(alpha_imm=True, halffirst=True))
    em("T_r2_ai_ef", gen(alpha_imm=True, late_fill=False))
    em("T_r2_ai_one", gen(alpha_imm=True, shift=False))
    em("S_b7hf_ae_x", genS.gen(bar=7, halffirst=True, aearly=True, xcd=True))
    em("s_A4w8", sol.gen(xcd=True, ld="nt", lay="A", R=4, wpb=8, order="wgil")[0])
    print(" ".join(n))
```

```python
import struct
from common import *
from genS import f32, offsets

def gen(mode="T", ld="nt", st="", rounds=2, bar=7, split=True, shift=True, halffirst=True, alpha_imm=False, xcd=True,
        late_fill=False, karg="x16", gbld="", pad=0):
    a = Asm()
    wpb = 8 if mode == "T" else 4
    if mode == "S": split = False
    block = 64 * wpb
    grid = ROWS // 4 // wpb
    X, F, Y, G, B = 4, 18, 32, 60, 88
    AA, A1, CK, S, Q = 116, 118, 120, 124, 126
    GR, GU = Y, Y + 8
    a(";@T0")
    if karg == "x16":
        a("s_load_dwordx16 s[4:19], s[0:1], 0")
    else:
        a("s_load_dwordx8 s[4:11], s[0:1], 0")
        a("s_load_dwordx4 s[12:15], s[0:1], 32")
    if mode == "T": a("v_readfirstlane_b32 s32, v0")
    else: a("s_nop 0")
    if xcd:
        a(f"s_and_b32 s3, s2, 7\ns_lshr_b32 s33, s2, 3\ns_lshl_b32 s3, s3, {(grid//8).bit_length()-1}\ns_add_u32 s3, s3, s33")
        a(f"v_lshrrev_b32 v1, 4, v0\ns_mul_i32 s3, s3, {4*wpb*ROWB}")
    else:
        a(f"v_lshrrev_b32 v1, 4, v0\ns_mul_i32 s3, s2, {4*wpb*ROWB}")
    a(f"""
    v_mul_u32_u24 v1, {ROWB}, v1
    v_and_b32 v2, 15, v0
    v_and_b32 v3, 63, v0
    v_add_u32 v1, s3, v1
    v_and_b32 v{CK+2}, 3, v0
    v_lshl_add_u32 v0, v2, 3, v1
    v_lshl_add_u32 v1, v2, 4, v1
    v_min_u32 v{CK+3}, 55, v3
    v_lshlrev_b32 v3, 5, v3
    v_lshlrev_b32 v{CK+3}, 4, v{CK+3}
    v_lshlrev_b32 v{CK+2}, 4, v{CK+2}
    v_lshlrev_b32 v{CK}, 5, v2
    v_lshlrev_b32 v{CK+1}, 4, v2
    s_movk_i32 s28, 0x3f80
    s_mov_b32 s29, 0
    s_mov_b32 s27, 0
    s_cmpk_ge_u32 s2, {grid}
    s_cbranch_scc1 L_end
    """)
    if mode == "T":
        a("s_cmpk_ge_u32 s32, 256")
        a("s_cbranch_scc1 L_g2")
        if split: a("s_bitcmp1_b32 s32, 6")
        else: a("s_nop 0")
    a("s_waitcnt lgkmcnt(0)")
    a(";@T1")
    def ldpair(j):
        if j < 3:
            a(f"global_load_dwordx4 v[{X+4*j}:{X+4*j+3}], v1, s[4:5] offset:{256*j} {ld}")
            a(f"global_load_dwordx4 v[{F+4*j}:{F+4*j+3}], v1, s[6:7] offset:{256*j} {ld}")
        else:
            a(f"global_load_dwordx2 v[{X+12}:{X+13}], v0, s[4:5] offset:768 {ld}")
            a(f"global_load_dwordx2 v[{F+12}:{F+13}], v0, s[6:7] offset:768 {ld}")
    def issue(last_bar):
        nb = 0
        for j in range(4):
            ldpair(j)
            if mode == "S":
                if j < 3 and bar >> j & 1: a("s_barrier")
            elif (rounds == 4 or (rounds == 2 and j & 1) or (rounds == 1 and j == 3)) and (j < 3 or last_bar):
                a("s_barrier"); nb += 1
        return nb
    def alpha():
        if alpha_imm: a("s_movk_i32 s26, 0x4000")
        else: a("s_load_dword s26, s[12:13], 0")
    if split:
        a("s_cselect_b64 s[8:9], s[10:11], s[8:9]")
        a(f"global_load_dwordx4 v[{GR}:{GR+3}], v{CK+3}, s[8:9] {gbld}")
        a("s_cselect_b32 s33, 2048, 0")
    else:
        a(f"global_load_dwordx4 v[{GR}:{GR+3}], v{CK+3}, s[8:9] {gbld}")
        a(f"global_load_dwordx4 v[{GR+4}:{GR+7}], v{CK+3}, s[10:11] {gbld}")
    alpha()
    nb = issue(True)
    a("s_mov_b32 s30, 0xffff0000")
    if split: a("v_add_u32 v3, s33, v3")
    def consts():
        a(f"""
        v_lshlrev_b64 v[{A1}:{A1+1}], v{CK+2}, s[28:29]
        v_mov_b32 v2, {f32(1e-5)}
        s_mov_b32 s28, {f32(1.0/448)}
        """)
    if mode == "S": consts()
    if mode == "T" and late_fill:
        for i in range(nb - 1): a("s_barrier")
    a("s_waitcnt vmcnt(8)")
    for k in range(4 if split else 8):
        a(f"v_lshlrev_b32 v{GU+2*k}, 16, v{GR+k}")
        a(f"v_and_b32 v{GU+2*k+1}, s30, v{GR+k}")
    a(f"ds_write_b128 v3, v[{GU}:{GU+3}]")
    a(f"ds_write_b128 v3, v[{GU+4}:{GU+7}] offset:16")
    if not split:
        a(f"ds_write_b128 v3, v[{GU+8}:{GU+11}] offset:2048")
        a(f"ds_write_b128 v3, v[{GU+12}:{GU+15}] offset:2064")
    if mode == "T":
        if not late_fill:
            for i in range(nb - 1): a("s_barrier")
        a("s_branch L_join")
        a("L_g2:")
        a("s_waitcnt lgkmcnt(0)")
        alpha()
        for i in range(nb): a("s_barrier")
        issue(False)
        a("L_join:")
        consts()
        a("s_waitcnt lgkmcnt(0)\ns_barrier")
    else:
        a("L_join:")
        a("s_waitcnt lgkmcnt(0)\ns_nop 0")
    a("s_lshl_b32 s31, s26, 16\ns_lshr_b32 s26, s31, 16")
    for j in range(3):
        a(f"ds_read_b128 v[{G+8*j}:{G+8*j+3}], v{CK} offset:{512*j}")
        a(f"ds_read_b128 v[{G+8*j+4}:{G+8*j+7}], v{CK} offset:{512*j+16}")
        a(f"ds_read_b128 v[{B+8*j}:{B+8*j+3}], v{CK} offset:{2048+512*j}")
        a(f"ds_read_b128 v[{B+8*j+4}:{B+8*j+7}], v{CK} offset:{2048+512*j+16}")
    a(f"ds_read_b128 v[{G+24}:{G+27}], v{CK+1} offset:1536")
    a(f"ds_read_b128 v[{B+24}:{B+27}], v{CK+1} offset:{2048+1536}")
    a(f"v_lshlrev_b64 v[{AA}:{AA+1}], v{CK+2}, s[26:27]")
    from genT import main, fix_align
    b = Asm()
    main(b, X, F, Y, G, B, AA, A1, CK, S, Q, shift, halffirst, st)
    import re
    for l in b.lines:
        m = re.match(r"\s*buffer_store_dword(x[24]) (v\[\d+:\d+\]), (v\d), s\[20:23\], 0 offen (offset:\d+)(.*)", l)
        if m: l = f"    global_store_dword{m.group(1)} {m.group(3)}, {m.group(2)}, s[14:15] {m.group(4)}{m.group(5)}"
        a.lines.append(l)
    a("L_end:")
    a("s_endpgm")
    txt = fix_align(a.text())
    s = wrap(txt, grid, block, 4096, 128, 40, "layout D, MFMA widening")
    s = s.replace(".text\n", ".text\n.p2align 12\n")
    return s

if __name__ == "__main__":
    import sol, genS, genT
    n = []
    def em(nm, s):
        open(f"../var/{nm}.s", "w").write(s); n.append(f"var/{nm}.s")
    em("V_T", gen())
    em("V_T_lf", gen(late_fill=True))
    em("V_T_r4", gen(rounds=4))
    em("V_T_r1", gen(rounds=1))
    em("V_T_ai", gen(alpha_imm=True))
    em("V_T_lin", gen(xcd=False))
    em("V_T_x8", gen(karg="x8"))
    em("V_S", gen(mode="S"))
    em("V_S_b2", gen(mode="S", bar=2))
    em("V_S_ai", gen(mode="S", alpha_imm=True))
    em("V_S_lin", gen(mode="S", xcd=False))
    em("U_ai", genT.gen(alpha_imm=True, late_fill=False, halffirst=True))
    sA = sol.gen(xcd=True, ld="nt", lay="A", R=4, wpb=8, order="wgil")[0]
    em("s_A4w8", sA)
    em("s_A4w8_1", sA.replace("    s_load_dwordx4 s[4:7], s[0:1], 0\n    s_load_dwordx2 s[32:33], s[0:1], 40\n", "    s_load_dwordx16 s[64:79], s[0:1], 0\n").replace("s_mov_b32 s16, s4", "s_mov_b64 s[16:17], s[64:65]").replace("    s_mov_b32 s17, s5\n", "").replace("s_mov_b32 s20, s6", "s_mov_b64 s[20:21], s[66:67]").replace("s_mov_b32 s21, s7", "s_mov_b64 s[32:33], s[74:75]").replace("next_free_sgpr 48", "next_free_sgpr 80"))
    print(" ".join(n))
```

```python
import re
def instrument(src, wg=0, amp=None, ampk=20, base=60):
    n = 0
    out = []
    for l in src.split("\n"):
        m = re.match(r"\s*;@T(\d+)(w?)", l)
        if m:
            k = int(m.group(1)); n = max(n, k + 1)
            out.append(f"    s_memrealtime s[{base+4*k}:{base+4*k+1}]")
            out.append(f"    s_memtime s[{base+4*k+2}:{base+4*k+3}]")
            if m.group(2):
                out.append("    s_waitcnt lgkmcnt(0)")
            continue
        if l.strip() == "s_endpgm":
            k = n; n += 1
            out.append("    s_waitcnt vmcnt(0)")
            out.append(f"    s_memrealtime s[{base+4*k}:{base+4*k+1}]")
            out.append(f"    s_memtime s[{base+4*k+2}:{base+4*k+3}]")
            out.append("    s_load_dwordx2 s[52:53], s[0:1], 48")
            out.append("    s_waitcnt lgkmcnt(0)")
            out.append(f"    s_cmp_lg_u32 s2, {wg}")
            out.append("    s_cbranch_scc1 L_dbg_done")
            out.append("    v_readfirstlane_b32 s56, v0")
            out.append("    s_nop 3")
            out.append("    s_cmp_lg_u32 s56, 0")
            out.append("    s_cbranch_scc1 L_dbg_done")
            out.append("    s_mov_b32 s54, 256")
            out.append("    s_mov_b32 s55, 0x20000")
            out.append("    s_mov_b64 exec, 1")
            out.append("    v_mov_b32 v1, 0")
            for i in range(1, n):
                out.append(f"    s_sub_u32 s57, s{base+4*i}, s{base}")
                out.append(f"    v_mov_b32 v2, s57")
                out.append(f"    buffer_store_dword v2, v1, s[52:55], 0 offen offset:{4*(i-1)}")
                out.append(f"    s_sub_u32 s57, s{base+4*i+2}, s{base+2}")
                out.append(f"    v_mov_b32 v3, s57")
                out.append(f"    buffer_store_dword v3, v1, s[52:55], 0 offen offset:{32+4*(i-1)}")
                out.append("    s_waitcnt vmcnt(0)")
            if amp is not None:
                a0, a1 = amp
                out.append(f"    s_sub_u32 s57, s{base+4*a1}, s{base+4*a0}")
                out.append(f"    s_min_u32 s57, s57, 5000")
                out.append(f"    s_mul_i32 s57, s57, {ampk}")
                out.append("    s_memrealtime s[58:59]")
                out.append("    s_waitcnt lgkmcnt(0)")
                out.append("    s_mov_b32 s56, s58")
                out.append("L_spin:")
                out.append("    s_memrealtime s[58:59]")
                out.append("    s_waitcnt lgkmcnt(0)")
                out.append("    s_sub_u32 s58, s58, s56")
                out.append("    s_cmp_lt_u32 s58, s57")
                out.append("    s_cbranch_scc1 L_spin")
            out.append("L_dbg_done:")
            out.append("    s_endpgm")
            continue
        out.append(l)
    s = "\n".join(out)
    s = re.sub(r"next_free_sgpr \d+", "next_free_sgpr 102", s)
    return s

def instrument_global(src, nwaves, amp="dur", ampk=20, base=60, mid=None):
    out = []
    for l in src.split("\n"):
        m = re.match(r"\s*;@T(\d+)(w?)", l)
        if m:
            k = int(m.group(1))
            if k == 0:
                out.append(f"    s_memrealtime s[{base}:{base+1}]")
            elif mid is not None and k == mid:
                out.append(f"    s_memrealtime s[{base+4}:{base+5}]")
            continue
        if l.strip() == "s_endpgm":
            o = out.append
            o("    s_waitcnt vmcnt(0)")
            o(f"    s_memrealtime s[{base+2}:{base+3}]")
            o("    s_load_dwordx2 s[52:53], s[0:1], 48")
            o("    s_waitcnt lgkmcnt(0)")
            o("    s_mov_b32 s54, 256")
            o("    s_mov_b32 s55, 0x20000")
            o("    s_mov_b64 exec, 1")
            o("    v_mov_b32 v1, 0")
            o(f"    s_not_b32 s57, s{base}")
            o("    v_mov_b32 v2, s57")
            o(f"    v_mov_b32 v3, s{base}")
            o(f"    s_not_b32 s57, s{base+2}")
            o("    v_mov_b32 v4, s57")
            o(f"    v_mov_b32 v5, s{base+2}")
            o(f"    s_not_b32 s57, s{base+4}")
            o("    v_mov_b32 v7, s57")
            o(f"    v_mov_b32 v8, s{base+4}")
            o("    v_mov_b32 v6, 1")
            o("    buffer_atomic_umax v2, v1, s[52:55], 0 offen offset:0 sc1")
            o("    buffer_atomic_umax v3, v1, s[52:55], 0 offen offset:4 sc1")
            o("    buffer_atomic_umax v4, v1, s[52:55], 0 offen offset:8 sc1")
            o("    buffer_atomic_umax v5, v1, s[52:55], 0 offen offset:12 sc1")
            if mid is not None:
                o("    buffer_atomic_umax v7, v1, s[52:55], 0 offen offset:20 sc1")
                o("    buffer_atomic_umax v8, v1, s[52:55], 0 offen offset:24 sc1")
            o("    s_waitcnt vmcnt(0)")
            o("    buffer_atomic_add v6, v1, s[52:55], 0 offen offset:16 sc0 sc1")
            o("    s_waitcnt vmcnt(0)")
            o("    v_readfirstlane_b32 s56, v6")
            o("    s_nop 3")
            o(f"    s_cmp_lg_u32 s56, {nwaves-1}")
            o("    s_cbranch_scc1 L_dbg_done")
            for i, off in enumerate([0, 4, 8, 12, 20, 24]):
                o(f"    v_mov_b32 v{2+i}, 0")
                o(f"    buffer_atomic_umax v{2+i}, v1, s[52:55], 0 offen offset:{off} sc0 sc1")
            o("    s_waitcnt vmcnt(0)")
            for i in range(6):
                o(f"    v_readfirstlane_b32 s{70+i}, v{2+i}")
            o("    s_nop 3")
            o("    s_not_b32 s70, s70")
            o("    s_not_b32 s72, s72")
            o("    s_not_b32 s74, s74")
            o("    s_sub_u32 s80, s71, s70")
            o("    s_sub_u32 s81, s72, s70")
            o("    s_sub_u32 s82, s73, s70")
            o("    s_sub_u32 s83, s74, s70")
            o("    s_sub_u32 s84, s75, s70")
            for i in range(5):
                o(f"    v_mov_b32 v2, s{80+i}")
                o(f"    buffer_store_dword v2, v1, s[52:55], 0 offen offset:{32+4*i}")
                o("    s_waitcnt vmcnt(0)")
            if amp:
                r = {"skew": 80, "first": 81, "dur": 82, "fmid": 83, "lmid": 84}[amp]
                o(f"    s_min_u32 s57, s{r}, 5000")
                o(f"    s_mul_i32 s57, s57, {ampk}")
                o("    s_memrealtime s[58:59]")
                o("    s_waitcnt lgkmcnt(0)")
                o("    s_mov_b32 s56, s58")
                o("L_spin:")
                o("    s_memrealtime s[58:59]")
                o("    s_waitcnt lgkmcnt(0)")
                o("    s_sub_u32 s58, s58, s56")
                o("    s_cmp_lt_u32 s58, s57")
                o("    s_cbranch_scc1 L_spin")
            o("L_dbg_done:")
            o("    s_endpgm")
            continue
        out.append(l)
    s = "\n".join(out)
    s = re.sub(r"next_free_sgpr \d+", "next_free_sgpr 102", s)
    return s

def instrument_ws(src, nwaves, wpb, amp="dur", ampk=20, base=60, mid=None, wait=3000):
    out = []
    sh = wpb.bit_length() - 1
    for l in src.split("\n"):
        m = re.match(r"\s*;@T(\d+)(w?)", l)
        if m:
            k = int(m.group(1))
            if k == 0:
                out.append(f"    s_memrealtime s[{base}:{base+1}]")
                out.append(f"    v_readfirstlane_b32 s92, v0")
                out.append(f"    s_mov_b32 s93, s2")
            elif mid is not None and k == mid:
                out.append(f"    s_memrealtime s[{base+4}:{base+5}]")
            continue
        if l.strip() == "s_endpgm":
            o = out.append
            o("    s_waitcnt vmcnt(0)")
            o(f"    s_memrealtime s[{base+2}:{base+3}]")
            o("    s_load_dwordx4 s[96:99], s[0:1], 48")
            o("    s_waitcnt lgkmcnt(0)")
            o("    s_mov_b32 s52, s96")
            o("    s_mov_b32 s53, s97")
            o("    s_mov_b32 s54, 256")
            o("    s_mov_b32 s55, 0x20000")
            o("    s_mov_b32 s48, s98")
            o("    s_mov_b32 s49, s99")
            o("    s_mov_b32 s50, 0x100000")
            o("    s_mov_b32 s51, 0x20000")
            o("    s_lshr_b32 s92, s92, 6")
            o(f"    s_mul_i32 s93, s93, {wpb}")
            o("    s_add_u32 s92, s92, s93")
            o("    s_lshl_b32 s93, s92, 4")
            o("    s_mov_b64 exec, 1")
            o("    v_mov_b32 v1, s93")
            o(f"    v_mov_b32 v4, s{base}")
            o(f"    v_mov_b32 v5, s{base+4}")
            o(f"    v_mov_b32 v6, s{base+2}")
            o(f"    v_mov_b32 v7, 0")
            o("    buffer_store_dwordx4 v[4:7], v1, s[48:51], 0 offen sc0 sc1")
            o("    s_cmp_lg_u32 s92, 0")
            o("    s_cbranch_scc1 L_dbg_done")
            o("    s_mov_b64 exec, -1")
            o("L_wait:")
            o("    s_memrealtime s[58:59]")
            o("    s_waitcnt lgkmcnt(0)")
            o(f"    s_sub_u32 s58, s58, s{base}")
            o(f"    s_cmp_lt_u32 s58, {wait}")
            o("    s_cbranch_scc1 L_wait")
            o(f"    s_sub_u32 s57, s{base}, 2000")
            o("    v_mbcnt_lo_u32_b32 v1, -1, 0")
            o("    v_mbcnt_hi_u32_b32 v1, -1, v1")
            o("    v_lshlrev_b32 v1, 4, v1")
            for i in range(3):
                o(f"    v_mov_b32 v{8+2*i}, -1")
                o(f"    v_mov_b32 v{9+2*i}, 0")
            o("    s_mov_b32 s56, 0")
            o("L_rd:")
            o("    buffer_load_dwordx4 v[4:7], v1, s[48:51], s56 offen sc0 sc1")
            o("    s_waitcnt vmcnt(0)")
            for i in range(3):
                o(f"    v_subrev_u32 v{4+i}, s57, v{4+i}")
                o(f"    v_min_u32 v{8+2*i}, v{8+2*i}, v{4+i}")
                o(f"    v_max_u32 v{9+2*i}, v{9+2*i}, v{4+i}")
            o("    s_add_u32 s56, s56, 1024")
            o(f"    s_cmp_lt_u32 s56, {nwaves*16}")
            o("    s_cbranch_scc1 L_rd")
            for i in range(3):
                o(f"    s_mov_b32 s{70+2*i}, -1")
                o(f"    s_mov_b32 s{71+2*i}, 0")
            o("    s_mov_b32 s56, 0")
            o("L_ln:")
            for i in range(3):
                o(f"    v_readlane_b32 s58, v{8+2*i}, s56")
                o(f"    v_readlane_b32 s59, v{9+2*i}, s56")
                o("    s_nop 3")
                o(f"    s_min_u32 s{70+2*i}, s{70+2*i}, s58")
                o(f"    s_max_u32 s{71+2*i}, s{71+2*i}, s59")
            o("    s_add_u32 s56, s56, 1")
            o("    s_cmp_lt_u32 s56, 64")
            o("    s_cbranch_scc1 L_ln")
            o("    s_sub_u32 s80, s71, s70")
            o("    s_sub_u32 s81, s74, s70")
            o("    s_sub_u32 s82, s75, s70")
            o("    s_sub_u32 s83, s72, s70")
            o("    s_sub_u32 s84, s73, s70")
            o("    s_sub_u32 s85, 2000, s70")
            o("    s_mov_b64 exec, 1")
            o("    v_mov_b32 v1, 0")
            for i in range(6):
                o(f"    v_mov_b32 v2, s{80+i}")
                o(f"    buffer_store_dword v2, v1, s[52:55], 0 offen offset:{4*i}")
                o("    s_waitcnt vmcnt(0)")
            if amp:
                r = {"skew": 80, "first": 81, "dur": 82, "fmid": 83, "lmid": 84, "w0": 85}[amp]
                o(f"    s_min_u32 s57, s{r}, 5000")
                o(f"    s_mul_i32 s57, s57, {ampk}")
                o("    s_memrealtime s[58:59]")
                o("    s_waitcnt lgkmcnt(0)")
                o("    s_mov_b32 s56, s58")
                o("L_spin:")
                o("    s_memrealtime s[58:59]")
                o("    s_waitcnt lgkmcnt(0)")
                o("    s_sub_u32 s58, s58, s56")
                o("    s_cmp_lt_u32 s58, s57")
                o("    s_cbranch_scc1 L_spin")
            o("L_dbg_done:")
            o("    s_endpgm")
            continue
        out.append(l)
    s = "\n".join(out)
    s = re.sub(r"next_free_sgpr \d+", "next_free_sgpr 102", s)
    return s

def instrument_all(src, wpb, base=52):
    out = []
    n = 0
    for l in src.split("\n"):
        m = re.match(r"\s*;@(T0|T1|R|E)\b", l)
        if m:
            out.append(f"    s_memrealtime s[{base+2*n}:{base+2*n+1}]")
            if n == 0:
                out.append(f"    v_readfirstlane_b32 s92, v0")
                out.append(f"    s_mov_b32 s93, s2")
            n += 1
            continue
        if l.strip() == "s_endpgm":
            o = out.append
            o("    s_waitcnt vmcnt(0)")
            o(f"    s_memrealtime s[{base+2*n}:{base+2*n+1}]")
            n += 1
            assert n <= 15
            o("    s_load_dwordx2 s[48:49], s[0:1], 56")
            o("    s_getreg_b32 s94, hwreg(HW_REG_HW_ID)")
            o("    s_getreg_b32 s95, hwreg(HW_REG_XCC_ID)")
            o("    s_waitcnt lgkmcnt(0)")
            o("    s_mov_b32 s50, 0x1000000")
            o("    s_mov_b32 s51, 0x20000")
            o("    s_and_b32 s95, s95, 15")
            o("    s_lshl_b32 s95, s95, 28")
            o("    s_and_b32 s94, s94, 0xfffffff")
            o("    s_or_b32 s94, s94, s95")
            o("    s_lshr_b32 s92, s92, 6")
            o(f"    s_mul_i32 s93, s93, {wpb}")
            o("    s_add_u32 s92, s92, s93")
            o("    s_lshl_b32 s93, s92, 6")
            o("    s_mov_b64 exec, 1")
            o("    v_mov_b32 v1, s93")
            for i in range(n):
                o(f"    v_mov_b32 v4, s{base+2*i}")
                o(f"    buffer_store_dword v4, v1, s[48:51], 0 offen offset:{4*i}")
            o(f"    v_mov_b32 v4, s94")
            o(f"    buffer_store_dword v4, v1, s[48:51], 0 offen offset:60")
            o("    s_endpgm")
            continue
        out.append(l)
    s = "\n".join(out)
    s = re.sub(r"next_free_sgpr \d+", "next_free_sgpr 102", s)
    return s
```

```python
from common import *
from instr import instrument_ws
def gen(wpb=4, R=8, lay="A", order="contig", ld="", st="", nostore=False, nv=None, xffirst=False, depth=None, late=False, st2=None, split=0, wbl2=None, xcd=False):
    a = Asm()
    if lay == "A":
        unit = 896; nunits = ROWS
    else:
        unit = 1024; nunits = NBYTES // 1024
    nwaves = nunits // R
    grid = nwaves // wpb
    assert grid * wpb * R == nunits
    block = 64 * wpb
    a(f"""
    ;@T0
    s_load_dwordx4 s[4:7], s[0:1], 0
    s_load_dwordx2 s[32:33], s[0:1], 40
    v_lshrrev_b32 v1, 6, v0
    v_and_b32 v2, 63, v0
    """)
    if xcd:
        a(f"s_and_b32 s3, s2, 7")
        a(f"s_mul_i32 s3, s3, {grid//8}")
        a(f"s_lshr_b32 s36, s2, 3")
        a(f"s_add_u32 s3, s3, s36")
        a(f"s_mul_i32 s3, s3, {wpb}")
    else:
        a(f"s_mul_i32 s3, s2, {wpb}")
    a("v_add_u32 v1, s3, v1")
    if lay == "C":
        assert R == 7
        a(f"""
        v_lshrrev_b32 v3, 3, v2
        v_and_b32 v2, 7, v2
        v_mul_u32_u24 v3, 896, v3
        v_lshl_add_u32 v2, v2, 4, v3
        v_mul_u32_u24 v1, 7168, v1
        v_add_u32 v1, v1, v2
        """)
        step = 128
    else:
        if order == "contig":
            a(f"v_mul_u32_u24 v1, {unit*R}, v1")
            step = unit
        elif order == "wgil":
            a(f"v_lshrrev_b32 v3, 6, v0")
            a(f"v_sub_u32 v1, v1, v3")
            a(f"v_mul_u32_u24 v1, {unit*R}, v1")
            a(f"v_mul_u32_u24 v3, {unit}, v3")
            a(f"v_add_u32 v1, v1, v3")
            step = unit * wpb
        elif order == "xslab":
            a(f"s_and_b32 s37, s2, 7")
            a(f"s_mul_i32 s37, s37, {nwaves//8*(R-1)}")
            a(f"v_add_u32 v1, s37, v1")
            a(f"v_mul_u32_u24 v1, {unit}, v1")
            step = unit * nwaves // 8
        else:
            a(f"v_mul_u32_u24 v1, {unit}, v1")
            step = unit * nwaves
        a("v_lshl_add_u32 v1, v2, 4, v1")
        if lay == "A":
            a("s_mov_b64 exec, 0x00ffffffffffffff") if False else a("s_bfm_b64 exec, 56, 0")
    a(f"""
    s_mov_b32 s18, {NBYTES}
    s_mov_b32 s19, 0x20000
    s_mov_b32 s22, {NBYTES}
    s_mov_b32 s23, 0x20000
    s_mov_b32 s34, {NBYTES}
    s_mov_b32 s35, 0x20000
    """)
    for j in range(1, R):
        a(f"s_mov_b32 s{40+j-1}, {step*j}") if j <= 8 else None
    a(f"""
    s_waitcnt lgkmcnt(0)
    ;@T1
    s_mov_b32 s16, s4
    s_mov_b32 s17, s5
    s_mov_b32 s20, s6
    s_mov_b32 s21, s7
    """)
    def so(j):
        if j == 0: return "0"
        if j <= 8: return f"s{40+j-1}"
        a(f"s_mov_b32 s38, {step*j}")
        return "s38"
    if depth is None: depth = R
    X = 4;
    def ldx(j):
        s = j % depth
        a(f"buffer_load_dwordx4 v[{X+8*s}:{X+8*s+3}], v1, s[16:19], {so(j)} offen {ld}")
    def ldf(j):
        s = j % depth
        a(f"buffer_load_dwordx4 v[{X+8*s+4}:{X+8*s+7}], v1, s[20:23], {so(j)} offen {ld}")
    if xffirst:
        for j in range(depth): ldx(j)
        for j in range(depth): ldf(j)
    else:
        for j in range(depth):
            ldx(j); ldf(j)
    q = []
    if xffirst:
        q = [("x", j) for j in range(depth)] + [("f", j) for j in range(depth)]
    else:
        for j in range(depth): q += [("x", j), ("f", j)]
    for j in range(R):
        idx = max(q.index(("x", j)), q.index(("f", j)))
        a(f"s_waitcnt vmcnt({len(q)-1-idx})")
        a(";@R")
        if j == 0: a(";@T4")
        if j == R-1: a(";@T5")
        s = j % depth
        T = X + 8*depth + 4*(j & 1)
        if late: T = X + 8*s
        for k in range(4):
            a(f"v_xor_b32 v{T+k}, v{X+8*s+k}, v{X+8*s+4+k}")
        if j + depth < R:
            ldx(j+depth); ldf(j+depth); q += [("x", j+depth), ("f", j+depth)]
        if not nostore and not late:
            pol = st if (st2 is None or j < split) else st2
            a(f"buffer_store_dwordx4 v[{T}:{T+3}], v1, s[32:35], {so(j)} offen {pol}")
            q.append(("s", j))
    if late:
        for j in range(R):
            T = X + 8*j
            pol = st if (st2 is None or j < split) else st2
            a(f"buffer_store_dwordx4 v[{T}:{T+3}], v1, s[32:35], {so(j)} offen {pol}")
    if wbl2 is not None:
        a("v_readfirstlane_b32 s36, v0")
        a(f"s_lshr_b32 s37, s2, 3")
        a(f"s_and_b32 s37, s37, {wbl2-1}")
        a("s_or_b32 s36, s36, s37")
        a("s_cmp_lg_u32 s36, 0")
        a("s_cbranch_scc1 L_nowb")
        a("s_waitcnt vmcnt(0)")
        a("buffer_wbl2 sc1")
        a("L_nowb:")
    a("s_endpgm")
    n = X + 8*depth + 8
    return wrap(a.text(), grid, block, 0, nv or n, 48, "sol"), nwaves
def emit(name, mid=5, **kw):
    s, nw = gen(**kw)
    open(f"../var/{name}.s", "w").write(s)
    open(f"../var/{name}_i.s", "w").write(instrument_ws(s, 64, kw.get("wpb", 4), amp=None, mid=mid, wait=0))
    return [f"var/{name}.s", f"var/{name}_i.s"]
if __name__ == "__main__":
    import sys
    n = []
    n += emit("sA8c", lay="A", R=8)
    n += emit("sA8s", lay="A", R=8, order="slab")
    n += emit("sF7c", lay="F", R=7)
    n += emit("sF7s", lay="F", R=7, order="slab")
    n += emit("sC7", lay="C", R=7)
    n += emit("sA2c", lay="A", R=2)
    n += emit("sA2s", lay="A", R=2, order="slab")
    n += emit("sA8s_ns", lay="A", R=8, order="slab", nostore=True)
    n += emit("sA8c_ns", lay="A", R=8, nostore=True)
    n += emit("sA8s_nt", lay="A", R=8, order="slab", ld="nt", st="nt")
    n += emit("sA8s_ntw", lay="A", R=8, order="slab", ld="nt", st="sc0 sc1")
    n += emit("sA8c_ntw", lay="A", R=8, ld="nt", st="sc0 sc1")
    print(" ".join(n))
```

```python
from genV import gen
from instr import instrument_ws
import re, sys
def mk(nm, amp, mid=4, wait=3000, **kw):
    s = gen(mode="S", **kw)
    s = s.replace("L_end:\n    s_endpgm", "    s_endpgm").replace("s_cbranch_scc1 L_end", "s_cbranch_scc1 L_dbg_done")
    k = [0]
    def r(m):
        k[0] += 1
        return "    ;@T5\n" if k[0] == mid else ""
    s = re.sub(r"    ;@R\n", r, s)
    if mid == 0: s = s.replace(";@T1", ";@T5")
    open(f"../var/{nm}.s", "w").write(instrument_ws(s, 2048 if wait else 64, 4, amp=amp, mid=5, wait=wait, ampk=20))
    return f"var/{nm}.s"
if __name__ == "__main__":
    n = []
    mk("HA_skew", "skew"); mk("HA_lT1", "lmid", mid=0); mk("HA_fR0", "fmid", mid=1); mk("HA_lR0", "lmid", mid=1); mk("HA_lR3", "lmid", mid=4); mk("HA_first", "first")
    n.append(mk("BA_T1_i", None, mid=0, wait=0)); n.append(mk("BA_R0_i", None, mid=1, wait=0)); n.append(mk("BA_R3_i", None, mid=4, wait=0))
    n.append(mk("BC_R3_i", None, mid=4, wait=0, ld="")); n.append(mk("BB_R3_i", None, mid=4, wait=0, st="sc0 sc1"))
    print(" ".join(n))
```

```python
import struct
from common import *
from genS import f32, offsets

def gen(mode="T", ld="nt", st="", rounds=2, bar=7, split=True, shift=True, halffirst=True, alpha_imm=False, xcd=True,
        late_fill=False, karg="x16", gbld="", pad=0, rounds2=None, prio=None, st2=None, hold=None, holdn=4, st1b=None, pace=None):
    a = Asm()
    wpb = 8 if mode == "T" else 4
    if mode == "S": split = False
    block = 64 * wpb
    grid = ROWS // 4 // wpb
    X, F, Y, G, B = 4, 18, 32, 60, 88
    AA, A1, CK, S, Q = 116, 118, 120, 124, 126
    GR, GU = Y, Y + 8
    a(";@T0")
    if karg == "x16":
        a("s_load_dwordx16 s[4:19], s[0:1], 0")
    else:
        a("s_load_dwordx8 s[4:11], s[0:1], 0")
        a("s_load_dwordx4 s[12:15], s[0:1], 32")
    if mode == "T": a("v_readfirstlane_b32 s32, v0")
    else: a("s_nop 0")
    if xcd:
        a(f"s_and_b32 s3, s2, 7\ns_lshr_b32 s33, s2, 3\ns_lshl_b32 s3, s3, {(grid//8).bit_length()-1}\ns_add_u32 s3, s3, s33")
        a(f"v_lshrrev_b32 v1, 4, v0\ns_mul_i32 s3, s3, {4*wpb*ROWB}")
    else:
        a(f"v_lshrrev_b32 v1, 4, v0\ns_mul_i32 s3, s2, {4*wpb*ROWB}")
    a(f"""
    v_mul_u32_u24 v1, {ROWB}, v1
    v_and_b32 v2, 15, v0
    v_and_b32 v3, 63, v0
    v_add_u32 v1, s3, v1
    v_and_b32 v{CK+2}, 3, v0
    v_lshl_add_u32 v0, v2, 3, v1
    v_lshl_add_u32 v1, v2, 4, v1
    v_min_u32 v{CK+3}, 55, v3
    v_lshlrev_b32 v3, 5, v3
    v_lshlrev_b32 v{CK+3}, 4, v{CK+3}
    v_lshlrev_b32 v{CK+2}, 4, v{CK+2}
    v_lshlrev_b32 v{CK}, 5, v2
    v_lshlrev_b32 v{CK+1}, 4, v2
    s_movk_i32 s28, 0x3f80
    s_mov_b32 s29, 0
    s_mov_b32 s27, 0
    s_cmpk_ge_u32 s2, {grid}
    s_cbranch_scc1 L_end
    """)
    if mode == "T":
        a("s_cmpk_ge_u32 s32, 256")
        a("s_cbranch_scc1 L_g2")
        if split: a("s_bitcmp1_b32 s32, 6")
        else: a("s_nop 0")
    a("s_waitcnt lgkmcnt(0)")
    a(";@T1")
    def ldpair(j):
        if j < 3:
            a(f"global_load_dwordx4 v[{X+4*j}:{X+4*j+3}], v1, s[4:5] offset:{256*j} {ld}")
            a(f"global_load_dwordx4 v[{F+4*j}:{F+4*j+3}], v1, s[6:7] offset:{256*j} {ld}")
        else:
            a(f"global_load_dwordx2 v[{X+12}:{X+13}], v0, s[4:5] offset:768 {ld}")
            a(f"global_load_dwordx2 v[{F+12}:{F+13}], v0, s[6:7] offset:768 {ld}")
    if rounds2 is None: rounds2 = rounds
    def issue(last_bar, rounds=rounds):
        nb = 0
        for j in range(4):
            ldpair(j)
            if mode == "S":
                if j < 3 and bar >> j & 1: a("s_barrier")
            elif (rounds == 4 or (rounds == 2 and j & 1) or (rounds == 1 and j == 3)) and (j < 3 or last_bar):
                a("s_barrier"); nb += 1
        return nb
    def alpha():
        if alpha_imm: a("s_movk_i32 s26, 0x4000")
        else: a("s_load_dword s26, s[12:13], 0")
    if split:
        a("s_cselect_b64 s[8:9], s[10:11], s[8:9]")
        a(f"global_load_dwordx4 v[{GR}:{GR+3}], v{CK+3}, s[8:9] {gbld}")
        a("s_cselect_b32 s33, 2048, 0")
    else:
        a(f"global_load_dwordx4 v[{GR}:{GR+3}], v{CK+3}, s[8:9] {gbld}")
        a(f"global_load_dwordx4 v[{GR+4}:{GR+7}], v{CK+3}, s[10:11] {gbld}")
    alpha()
    nb = issue(True)
    a("s_mov_b32 s30, 0xffff0000")
    if split: a("v_add_u32 v3, s33, v3")
    def consts():
        a(f"""
        v_lshlrev_b64 v[{A1}:{A1+1}], v{CK+2}, s[28:29]
        v_mov_b32 v2, {f32(1e-5)}
        s_mov_b32 s28, {f32(1.0/448)}
        """)
    if mode == "S": consts()
    if mode == "T" and late_fill:
        for i in range(rounds2 - 1): a("s_barrier")
    a("s_waitcnt vmcnt(8)")
    for k in range(4 if split else 8):
        a(f"v_lshlrev_b32 v{GU+2*k}, 16, v{GR+k}")
        a(f"v_and_b32 v{GU+2*k+1}, s30, v{GR+k}")
    a(f"ds_write_b128 v3, v[{GU}:{GU+3}]")
    a(f"ds_write_b128 v3, v[{GU+4}:{GU+7}] offset:16")
    if not split:
        a(f"ds_write_b128 v3, v[{GU+8}:{GU+11}] offset:2048")
        a(f"ds_write_b128 v3, v[{GU+12}:{GU+15}] offset:2064")
    if mode == "T":
        if not late_fill:
            for i in range(rounds2 - 1): a("s_barrier")
        if prio and prio[0]: a(f"s_setprio {prio[0]}")
        a("s_branch L_join")
        a("L_g2:")
        a("s_waitcnt lgkmcnt(0)")
        alpha()
        for i in range(nb): a("s_barrier")
        issue(False, rounds2)
        if prio and prio[1]: a(f"s_setprio {prio[1]}")
        a("L_join:")
        consts()
        a("s_waitcnt lgkmcnt(0)\ns_barrier")
    else:
        a("L_join:")
        a("s_waitcnt lgkmcnt(0)\ns_nop 0")
    a("s_lshl_b32 s31, s26, 16\ns_lshr_b32 s26, s31, 16")
    for j in range(3):
        a(f"ds_read_b128 v[{G+8*j}:{G+8*j+3}], v{CK} offset:{512*j}")
        a(f"ds_read_b128 v[{G+8*j+4}:{G+8*j+7}], v{CK} offset:{512*j+16}")
        a(f"ds_read_b128 v[{B+8*j}:{B+8*j+3}], v{CK} offset:{2048+512*j}")
        a(f"ds_read_b128 v[{B+8*j+4}:{B+8*j+7}], v{CK} offset:{2048+512*j+16}")
    a(f"ds_read_b128 v[{G+24}:{G+27}], v{CK+1} offset:1536")
    a(f"ds_read_b128 v[{B+24}:{B+27}], v{CK+1} offset:{2048+1536}")
    a(f"v_lshlrev_b64 v[{AA}:{AA+1}], v{CK+2}, s[26:27]")
    from genT import main, fix_align
    b = Asm()
    main(b, X, F, Y, G, B, AA, A1, CK, S, Q, shift, halffirst, st)
    import re
    body = []
    for l in b.lines:
        m = re.match(r"\s*buffer_store_dword(x[24]) (v\[\d+:\d+\]), (v\d), s\[20:23\], 0 offen (offset:\d+)(.*)", l)
        if m: l = f"    global_store_dword{m.group(1)} {m.group(3)}, {m.group(2)}, s[14:15] {m.group(4)}"
        body.append(l)
    if st2 is None:
        a.lines += [l + " " + st if "global_store" in l else l for l in body]
        a("L_end:")
        a("s_endpgm")
    else:
        k = next(i for i, l in enumerate(body) if "op_sel:[0,0,1]" in l)
        pre, p2 = body[:k], body[k:]
        a("s_cmpk_lt_u32 s32, 256" if mode == "T" else f"s_cmpk_lt_u32 s2, {grid//2}")
        a("s_nop 0")
        if hold is not None:
            if hold != "red":
                w = f"    s_waitcnt vmcnt({hold})"
                i = max(j for j, l in enumerate(pre) if l == w)
                pre[i+1:i+1] = ["    s_cbranch_scc1 L_nb", "    s_barrier", "L_nb:"]
        a.lines += pre
        a("s_cbranch_scc1 L_p2a\n" + ("s_barrier" if hold == "red" else "s_nop 0"))
        a.lines += [l + " " + st2 if "global_store" in l else l for l in p2]
        a("L_end:")
        a("s_endpgm")
        a("s_nop 0")
        a("L_p2a:")
        if hold is None:
            a.lines += [l + " " + st if "global_store" in l else l for l in p2 if ";@" not in l]
        else:
            sts = [l for l in p2 if "global_store" in l]
            early = sts[:len(sts) - holdn]
            for l in p2:
                if ";@" in l: continue
                if "global_store" in l:
                    if l in early: a.lines.append(l + " " + st)
                else: a.lines.append(l)
            a("s_barrier")
            for i, l in enumerate(sts[len(sts) - holdn:]):
                if pace is not None and i > pace: a(f"s_waitcnt vmcnt({pace})")
                a.lines.append(l + " " + st1b)
        a("s_endpgm")
    txt = fix_align(a.text())
    s = wrap(txt, grid, block, 4096, 128, 40, "layout D, MFMA widening")
    s = s.replace(".text\n", ".text\n.p2align 12\n")
    return s

if __name__ == "__main__":
    import sol, genS, genT
    n = []
    def em(nm, s):
        open(f"../var/{nm}.s", "w").write(s); n.append(f"var/{nm}.s")
    W = "sc0 sc1"
    kw = dict(st2="nt", st1b="nt", xcd=False, halffirst=False)
    em("Z_4", gen(hold=0, **kw))
    em("Z_3", gen(hold=0, holdn=3, **kw))
    em("Z_2", gen(hold=0, holdn=2, **kw))
    em("Z_1", gen(hold=0, holdn=1, **kw))
    em("Z_0", gen(st2="nt", xcd=False, halffirst=False))
    em("Z_4p0", gen(hold=0, pace=0, **kw))
    em("Z_4p1", gen(hold=0, pace=1, **kw))
    em("Z_4h2p0", gen(hold=2, pace=0, **kw))
    em("Z_4r4", gen(hold=0, rounds=4, **kw))
    em("Z_4r4p0", gen(hold=0, rounds=4, pace=0, **kw))
    em("Z_4r4lf", gen(hold=0, rounds=4, late_fill=True, **kw))
    em("Z_2red", gen(hold="red", holdn=2, **kw))
    print(" ".join(n))
```

```python
from genV import gen
from instr import instrument_ws
import re, sys
def fx(s):
    s = s.replace("s_cbranch_scc1 L_end", "s_cbranch_scc1 L_dbg_done")
    if "L_p2a" in s:
        s = s.replace("L_end:\n    s_endpgm\n", "    s_branch L_fin\n").replace("    s_endpgm\n", "L_fin:\n    s_endpgm\n")
    else:
        s = s.replace("L_end:\n", "")
    s = s.replace("    ;@T1\n", "").replace("    ;@E\n", "")
    k = [0]
    def r(m):
        k[0] += 1
        return "    ;@T5\n" if k[0] == 4 else ""
    return re.sub(r"    ;@R\n", r, s)
def mk(nm, amp, wait=3000, **kw):
    s = fx(gen(**kw))
    open(f"../var/{nm}.s", "w").write(instrument_ws(s, 2048 if wait else 64, 8, amp=amp, mid=5, wait=wait, ampk=20))
    return f"var/{nm}.s"
if __name__ == "__main__":
    n = []
    z4 = dict(st2="nt", st1b="nt", xcd=False, halffirst=False, hold=0)
    z0 = dict(st2="nt", xcd=False, halffirst=False)
    mk("HZ4_none", None, **z4); mk("HZ4_dur", "dur", **z4); mk("HZ4_lmid", "lmid", **z4)
    mk("HZ0_dur", "dur", **z0); mk("HZ0_lmid", "lmid", **z0)
    n.append(mk("BZ4_i", None, wait=0, **z4)); n.append(mk("BZ0_i", None, wait=0, **z0))
    print(" ".join(n))
```

```python
from common import *
from genS import f32, offsets

X, F, Y, G, B = 4, 18, 32, 60, 88
AA, A1, CK, S, Q = 116, 118, 120, 124, 126
GR, GU = Y, Y + 4
AD = Y + 24

def gen(ld="nt", st1="nt", st2="nt", W2=1152, touch=True, quarter=False, gbpos=0, comments=False, otouch=False):
    a = Asm()
    c = (lambda s: a("; " + s)) if comments else (lambda s: None)
    yp = lambda i: f"v[{Y+2*i}:{Y+2*i+1}]"
    y4 = lambda h: f"v[{Y+4*h}:{Y+4*h+3}]"
    def ldpair(j):
        if j < 3:
            a(f"global_load_dwordx4 v[{X+4*j}:{X+4*j+3}], v1, s[4:5] offset:{256*j} {ld}")
            a(f"global_load_dwordx4 v[{F+4*j}:{F+4*j+3}], v1, s[6:7] offset:{256*j} {ld}")
        else:
            a(f"global_load_dwordx2 v[{X+12}:{X+13}], v0, s[4:5] offset:768 {ld}")
            a(f"global_load_dwordx2 v[{F+12}:{F+13}], v0, s[6:7] offset:768 {ld}")
    def store(j, pol):
        if j < 3: a(f"global_store_dwordx4 v1, v[{X+4*j}:{X+4*j+3}], s[14:15] offset:{256*j} {pol}")
        else: a(f"global_store_dwordx2 v0, v[{X+12}:{X+13}], s[14:15] offset:768 {pol}")
    def pass2(pol):
        for j in range(4):
            n = 4 if j < 3 else 2
            for k in range(n):
                i = 4*j+k
                a(f"v_pk_fma_f32 {yp(i)}, {yp(i)}, v[{Q}:{Q+1}], v[{Q}:{Q+1}] op_sel:[0,0,1] op_sel_hi:[1,0,1]")
            for k in range(n):
                i = 4*j+k
                a(f"v_pk_fma_f32 {yp(i)}, {yp(i)}, v[{G+2*i}:{G+2*i+1}], v[{B+2*i}:{B+2*i+1}]")
            for k in range(n):
                i = 4*j+k
                a(f"v_cvt_pk_bf16_f32 v{X+i}, v{Y+2*i}, v{Y+2*i+1}")
            if pol is not None: store(j, pol)
    a(";@T0")
    c("s[4:5]=x s[6:7]=f s[8:9]=g s[10:11]=b s[12:13]=alpha s[14:15]=out (one scalar load for all pointers)")
    a(f"""
    s_load_dwordx16 s[4:19], s[0:1], 0
    v_readfirstlane_b32 s32, v0
    v_lshrrev_b32 v1, 4, v0
    s_mul_i32 s3, s2, {32*ROWB}
    v_mul_u32_u24 v1, {ROWB}, v1
    v_and_b32 v2, 15, v0
    v_and_b32 v3, 63, v0
    v_add_u32 v1, s3, v1
    v_and_b32 v{AD+2}, 3, v0
    v_lshl_add_u32 v0, v2, 3, v1
    v_lshl_add_u32 v1, v2, 4, v1
    v_min_u32 v{AD+3}, 55, v3
    v_lshlrev_b32 v3, 5, v3
    v_lshlrev_b32 v{AD+3}, 4, v{AD+3}
    v_lshlrev_b32 v{AD+2}, 4, v{AD+2}
    v_lshlrev_b32 v{AD}, 5, v2
    v_lshlrev_b32 v{AD+1}, 4, v2
    {f"v_mov_b32_e64 v{S}, s3" if otouch else ""}
    s_movk_i32 s28, 0x3f80
    s_mov_b32 s29, 0
    s_mov_b32 s27, 0
    s_cmpk_ge_u32 s2, 256
    s_cbranch_scc1 L_exit
    s_cmpk_ge_u32 s32, 256
    s_cbranch_scc1 {"L_touch" if touch else "L_g2"}
    s_bitcmp1_b32 s32, 6
    s_waitcnt lgkmcnt(0)
    ;@T1
    """)
    def gbl():
        a("s_cselect_b64 s[8:9], s[10:11], s[8:9]")
        a(f"global_load_dwordx4 v[{GR}:{GR+3}], v{AD+3}, s[8:9]")
        a("s_cselect_b32 s33, 2048, 0")
        if otouch: a(f"global_load_dword v{S+1}, v{S}, s[14:15]")
        a("s_load_dword s26, s[12:13], 0")
    if gbpos == 0: gbl()
    ldpair(0)
    if gbpos == 1: gbl()
    ldpair(1); a("s_barrier"); ldpair(2); ldpair(3); a("s_barrier")
    a(f"""
    s_mov_b32 s30, 0xffff0000
    v_add_u32 v3, s33, v3
    s_waitcnt vmcnt({8-2*gbpos})
    """)
    for k in range(4):
        a(f"v_lshlrev_b32 v{GU+2*k}, 16, v{GR+k}")
        a(f"v_and_b32 v{GU+2*k+1}, s30, v{GR+k}")
    a(f"""
    ds_write_b128 v3, v[{GU}:{GU+3}]
    ds_write_b128 v3, v[{GU+4}:{GU+7}] offset:16
    s_barrier
    s_branch L_join
L_g2:
    s_waitcnt lgkmcnt(0)
    s_barrier
    s_load_dword s26, s[12:13], 0
    s_barrier
    """)
    ldpair(0); ldpair(1); a("s_barrier"); ldpair(2); ldpair(3)
    a(f"""
L_join:
    v_lshlrev_b64 v[{A1}:{A1+1}], v{AD+2}, s[28:29]
    v_mov_b32 v2, {f32(1e-5)}
    s_mov_b32 s28, {f32(1.0/448)}
    s_waitcnt lgkmcnt(0)
    s_barrier
    s_lshl_b32 s31, s26, 16
    s_lshr_b32 s26, s31, 16
    """)
    for j in range(3):
        a(f"ds_read_b128 v[{G+8*j}:{G+8*j+3}], v{AD} offset:{512*j}")
        a(f"ds_read_b128 v[{G+8*j+4}:{G+8*j+7}], v{AD} offset:{512*j+16}")
        a(f"ds_read_b128 v[{B+8*j}:{B+8*j+3}], v{AD} offset:{2048+512*j}")
        a(f"ds_read_b128 v[{B+8*j+4}:{B+8*j+7}], v{AD} offset:{2048+512*j+16}")
    a(f"ds_read_b128 v[{G+24}:{G+27}], v{AD+1} offset:1536")
    a(f"ds_read_b128 v[{B+24}:{B+27}], v{AD+1} offset:{2048+1536}")
    a(f"v_lshlrev_b64 v[{AA}:{AA+1}], v{AD+2}, s[26:27]")
    a("s_cmpk_lt_u32 s32, 256")
    a("s_branch L_main")
    a("L_p2a:")
    pass2(None)
    a("s_barrier")
    for j in range(4): store(j, st1)
    a("L_exit:")
    a("s_endpgm")
    a(f".org {NAME}+{W2}, 0")
    a("L_touch:")
    a("s_branch L_g2")
    a("s_nop 0")
    a("L_main:")
    C0 = f"v[{CK}:{CK+3}]"
    MX = lambda h: f"v_mfma_f32_4x4x4_16b_bf16 {y4(h)}, v[{AA}:{AA+1}], v[{X+2*h}:{X+2*h+1}], {C0}"
    MF = lambda h: f"v_mfma_f32_4x4x4_16b_bf16 {y4(h)}, v[{A1}:{A1+1}], v[{F+2*h}:{F+2*h+1}], {y4(h)}"
    def aops(h):
        r = []
        for e in range(4):
            y = Y + 4*h + e
            r.append(f"v_add_f32{{}} v{S+(e&1)}, v{S+(e&1)}, v{y}")
            r.append(f"v_fmac_f32{{}} v{Q+(e&1)}, v{y}, v{y}")
        return r
    def pkacc(h):
        for i in (2*h, 2*h+1):
            a(f"v_pk_add_f32 v[{S}:{S+1}], v[{S}:{S+1}], {yp(i)}")
            a(f"v_pk_fma_f32 v[{Q}:{Q+1}], {yp(i)}, {yp(i)}, v[{Q}:{Q+1}]")
    a("s_waitcnt vmcnt(6)")
    a(";@R")
    a(f"v_lshlrev_b32 v{S}, 16, v{X}")
    a(f"v_lshlrev_b32_e64 v{S+1}, 16, v{F}")
    a(f"v_fma_f32 v{S}, -s31, v{S}, -v{S+1}")
    a("s_nop 0\ns_nop 0")
    for k in range(4):
        a(f"v_mov_b32_dpp v{CK+k}, v{S} row_newbcast:0 row_mask:0xf bank_mask:0xf")
    a("s_nop 0\ns_nop 0")
    a(MX(0)); a(MX(1)); a("s_nop 0\ns_nop 0"); a(MF(0)); a(MF(1))
    a("s_nop 1\ns_nop 1")
    a(f"v_pk_add_f32 v[{S}:{S+1}], {yp(0)}, {yp(1)}")
    a(f"v_pk_mul_f32 v[{Q}:{Q+1}], {yp(0)}, {yp(0)}")
    a(f"v_pk_fma_f32 v[{Q}:{Q+1}], {yp(1)}, {yp(1)}, v[{Q}:{Q+1}]")
    for ch in (1, 2):
        ops = aops(2*ch - 1)
        a(f"s_waitcnt vmcnt({6-2*ch})")
        a(";@R")
        a(ops[0].format(""))
        a(MX(2*ch)); a(ops[1].format("_e64")); a(MX(2*ch+1)); a(ops[2].format("_e64"))
        a(MF(2*ch)); a(ops[3].format("_e64")); a(MF(2*ch+1))
        for o in ops[4:]: a(o.format(""))
        pkacc(2*ch)
    ops = aops(5)
    a("s_waitcnt vmcnt(0)")
    a(";@R")
    a("s_cbranch_scc1 L_nb\ns_barrier\nL_nb:")
    a(ops[0].format(""))
    a(MX(6)); a(ops[1].format("")); a(ops[2].format("")); a(MF(6))
    for o in ops[3:7]: a(o.format(""))
    a(ops[7].format("_e64"))
    pkacc(6)
    mods = ["quad_perm:[1,0,3,2]", "quad_perm:[2,3,0,1]", "row_half_mirror", "row_mirror"]
    a(f"v_add_f32 v{S}, v{S}, v{S+1}")
    a(f"v_add_f32 v{Q}, v{Q}, v{Q+1}")
    for n, m in enumerate(mods):
        a("v_nop_e64")
        a(f"v_add_f32_dpp v{S}, v{S}, v{S} {m} row_mask:0xf bank_mask:0xf")
        a(f"v_add_f32_dpp v{Q}, v{Q}, v{Q} {m} row_mask:0xf bank_mask:0xf")
    a(f"v_mul_f32_e64 v{S}, s28, v{S}")
    a(f"v_fma_f32 v{Q}, v{Q}, s28, v2")
    a(f"v_fma_f32 v{Q}, -v{S}, v{S}, v{Q}")
    a(f"v_rsq_f32 v{Q}, v{Q}")
    a("s_waitcnt lgkmcnt(0)")
    a(f"v_mul_f32 v{Q+1}, -v{S}, v{Q}")
    a("s_cbranch_scc1 L_p2a\ns_nop 0")
    pass2(st2)
    a(";@E")
    a("s_endpgm")
    txt = a.text()
    s = wrap(txt, 256, 512, 4096, 128, 34, "layout D, two generations")
    s = s.replace(".text\n", ".text\n.p2align 12\n")
    return s

if __name__ == "__main__":
    import genV
    n = []
    def em(nm, s):
        open(f"../var/{nm}.s", "w").write(s); n.append(f"var/{nm}.s")
    W = "sc0 sc1"
    em("F_gb1", gen(gbpos=1))
    em("F_gb1_ot", gen(gbpos=1, otouch=True))
    em("F_gb0_ot", gen(gbpos=0, otouch=True))
    em("F_gb1_ot_ww", gen(gbpos=1, otouch=True, st1=W, st2=W))
    em("F_gb1_b", gen(gbpos=1))
    em("F_gb1_ot_b", gen(gbpos=1, otouch=True))
    print(" ".join(n))
```

```python
import struct
from common import *
from genS import f32, offsets

def gen(mode="T", ld="nt", st="", rounds=2, bar=7, split=True, shift=True, halffirst=True, alpha_imm=False, xcd=True,
        late_fill=False, karg="x16", gbld="", pad=0, rounds2=None, prio=None, st2=None, hold=None, holdn=4, st1b=None, pace=None, gbpos=0, apos=0):
    a = Asm()
    wpb = 8 if mode == "T" else 4
    if mode == "S": split = False
    block = 64 * wpb
    grid = ROWS // 4 // wpb
    X, F, Y, G, B = 4, 18, 32, 60, 88
    AA, A1, CK, S, Q = 116, 118, 120, 124, 126
    GR, GU = Y, Y + 8
    a(";@T0")
    if karg == "x16":
        a("s_load_dwordx16 s[4:19], s[0:1], 0")
    else:
        a("s_load_dwordx8 s[4:11], s[0:1], 0")
        a("s_load_dwordx4 s[12:15], s[0:1], 32")
    if mode == "T": a("v_readfirstlane_b32 s32, v0")
    else: a("s_nop 0")
    if xcd:
        a(f"s_and_b32 s3, s2, 7\ns_lshr_b32 s33, s2, 3\ns_lshl_b32 s3, s3, {(grid//8).bit_length()-1}\ns_add_u32 s3, s3, s33")
        a(f"v_lshrrev_b32 v1, 4, v0\ns_mul_i32 s3, s3, {4*wpb*ROWB}")
    else:
        a(f"v_lshrrev_b32 v1, 4, v0\ns_mul_i32 s3, s2, {4*wpb*ROWB}")
    a(f"""
    v_mul_u32_u24 v1, {ROWB}, v1
    v_and_b32 v2, 15, v0
    v_and_b32 v3, 63, v0
    v_add_u32 v1, s3, v1
    v_and_b32 v{CK+2}, 3, v0
    v_lshl_add_u32 v0, v2, 3, v1
    v_lshl_add_u32 v1, v2, 4, v1
    v_min_u32 v{CK+3}, 55, v3
    v_lshlrev_b32 v3, 5, v3
    v_lshlrev_b32 v{CK+3}, 4, v{CK+3}
    v_lshlrev_b32 v{CK+2}, 4, v{CK+2}
    v_lshlrev_b32 v{CK}, 5, v2
    v_lshlrev_b32 v{CK+1}, 4, v2
    s_movk_i32 s28, 0x3f80
    s_mov_b32 s29, 0
    s_mov_b32 s27, 0
    s_cmpk_ge_u32 s2, {grid}
    s_cbranch_scc1 L_end
    """)
    if mode == "T":
        a("s_cmpk_ge_u32 s32, 256")
        a("s_cbranch_scc1 L_g2")
        if split: a("s_bitcmp1_b32 s32, 6")
        else: a("s_nop 0")
    a("s_waitcnt lgkmcnt(0)")
    a(";@T1")
    def ldpair(j):
        if j < 3:
            a(f"global_load_dwordx4 v[{X+4*j}:{X+4*j+3}], v1, s[4:5] offset:{256*j} {ld}")
            a(f"global_load_dwordx4 v[{F+4*j}:{F+4*j+3}], v1, s[6:7] offset:{256*j} {ld}")
        else:
            a(f"global_load_dwordx2 v[{X+12}:{X+13}], v0, s[4:5] offset:768 {ld}")
            a(f"global_load_dwordx2 v[{F+12}:{F+13}], v0, s[6:7] offset:768 {ld}")
    if rounds2 is None: rounds2 = rounds
    def issue(last_bar, rounds=rounds, extra=None):
        nb = 0
        for j in range(4):
            ldpair(j)
            if extra and j in extra: extra[j]()
            if mode == "S":
                if j < 3 and bar >> j & 1: a("s_barrier")
            elif (rounds == 4 or (rounds == 2 and j & 1) or (rounds == 1 and j == 3)) and (j < 3 or last_bar):
                a("s_barrier"); nb += 1
        return nb
    def alpha():
        if alpha_imm: a("s_movk_i32 s26, 0x4000")
        else: a("s_load_dword s26, s[12:13], 0")
    def gbl():
        if split:
            a("s_cselect_b64 s[8:9], s[10:11], s[8:9]")
            a(f"global_load_dwordx4 v[{GR}:{GR+3}], v{CK+3}, s[8:9] {gbld}")
            a("s_cselect_b32 s33, 2048, 0")
        else:
            a(f"global_load_dwordx4 v[{GR}:{GR+3}], v{CK+3}, s[8:9] {gbld}")
            a(f"global_load_dwordx4 v[{GR+4}:{GR+7}], v{CK+3}, s[10:11] {gbld}")
    ex = {}
    if gbpos == 0: gbl()
    if apos == 0: alpha()
    def e0():
        if gbpos == 1: gbl()
        if apos == 1: alpha()
    def e1():
        if gbpos == 2: gbl()
    nb = issue(True, extra={0: e0, 1: e1})
    a("s_mov_b32 s30, 0xffff0000")
    if split: a("v_add_u32 v3, s33, v3")
    def consts():
        a(f"""
        v_lshlrev_b64 v[{A1}:{A1+1}], v{CK+2}, s[28:29]
        v_mov_b32 v2, {f32(1e-5)}
        s_mov_b32 s28, {f32(1.0/448)}
        """)
    if mode == "S": consts()
    if mode == "T" and late_fill:
        for i in range(rounds2 - 1): a("s_barrier")
    a(f"s_waitcnt vmcnt({8-2*gbpos})")
    for k in range(4 if split else 8):
        a(f"v_lshlrev_b32 v{GU+2*k}, 16, v{GR+k}")
        a(f"v_and_b32 v{GU+2*k+1}, s30, v{GR+k}")
    a(f"ds_write_b128 v3, v[{GU}:{GU+3}]")
    a(f"ds_write_b128 v3, v[{GU+4}:{GU+7}] offset:16")
    if not split:
        a(f"ds_write_b128 v3, v[{GU+8}:{GU+11}] offset:2048")
        a(f"ds_write_b128 v3, v[{GU+12}:{GU+15}] offset:2064")
    if mode == "T":
        if not late_fill:
            for i in range(rounds2 - 1): a("s_barrier")
        if prio and prio[0]: a(f"s_setprio {prio[0]}")
        a("s_branch L_join")
        a("L_g2:")
        a("s_waitcnt lgkmcnt(0)")
        alpha()
        for i in range(nb): a("s_barrier")
        issue(False, rounds2)
        if prio and prio[1]: a(f"s_setprio {prio[1]}")
        a("L_join:")
        consts()
        a("s_waitcnt lgkmcnt(0)\ns_barrier")
    else:
        a("L_join:")
        a("s_waitcnt lgkmcnt(0)\ns_nop 0")
    a("s_lshl_b32 s31, s26, 16\ns_lshr_b32 s26, s31, 16")
    for j in range(3):
        a(f"ds_read_b128 v[{G+8*j}:{G+8*j+3}], v{CK} offset:{512*j}")
        a(f"ds_read_b128 v[{G+8*j+4}:{G+8*j+7}], v{CK} offset:{512*j+16}")
        a(f"ds_read_b128 v[{B+8*j}:{B+8*j+3}], v{CK} offset:{2048+512*j}")
        a(f"ds_read_b128 v[{B+8*j+4}:{B+8*j+7}], v{CK} offset:{2048+512*j+16}")
    a(f"ds_read_b128 v[{G+24}:{G+27}], v{CK+1} offset:1536")
    a(f"ds_read_b128 v[{B+24}:{B+27}], v{CK+1} offset:{2048+1536}")
    a(f"v_lshlrev_b64 v[{AA}:{AA+1}], v{CK+2}, s[26:27]")
    from genT import main, fix_align
    b = Asm()
    main(b, X, F, Y, G, B, AA, A1, CK, S, Q, shift, halffirst, st)
    import re
    body = []
    for l in b.lines:
        m = re.match(r"\s*buffer_store_dword(x[24]) (v\[\d+:\d+\]), (v\d), s\[20:23\], 0 offen (offset:\d+)(.*)", l)
        if m: l = f"    global_store_dword{m.group(1)} {m.group(3)}, {m.group(2)}, s[14:15] {m.group(4)}"
        body.append(l)
    if st2 is None:
        a.lines += [l + " " + st if "global_store" in l else l for l in body]
        a("L_end:")
        a("s_endpgm")
    else:
        k = next(i for i, l in enumerate(body) if "op_sel:[0,0,1]" in l)
        pre, p2 = body[:k], body[k:]
        a("s_cmpk_lt_u32 s32, 256" if mode == "T" else f"s_cmpk_lt_u32 s2, {grid//2}")
        a("s_nop 0")
        if hold is not None:
            if hold != "red":
                w = f"    s_waitcnt vmcnt({hold})"
                i = max(j for j, l in enumerate(pre) if l == w)
                pre[i+1:i+1] = ["    s_cbranch_scc1 L_nb", "    s_barrier", "L_nb:"]
        a.lines += pre
        a("s_cbranch_scc1 L_p2a\n" + ("s_barrier" if hold == "red" else "s_nop 0"))
        a.lines += [l + " " + st2 if "global_store" in l else l for l in p2]
        a("L_end:")
        a("s_endpgm")
        a("s_nop 0")
        a("L_p2a:")
        if hold is None:
            a.lines += [l + " " + st if "global_store" in l else l for l in p2 if ";@" not in l]
        else:
            sts = [l for l in p2 if "global_store" in l]
            early = sts[:len(sts) - holdn]
            for l in p2:
                if ";@" in l: continue
                if "global_store" in l:
                    if l in early: a.lines.append(l + " " + st)
                else: a.lines.append(l)
            a("s_barrier")
            for i, l in enumerate(sts[len(sts) - holdn:]):
                if pace is not None and i > pace: a(f"s_waitcnt vmcnt({pace})")
                a.lines.append(l + " " + st1b)
        a("s_endpgm")
    txt = fix_align(a.text())
    s = wrap(txt, grid, block, 4096, 128, 40, "layout D, MFMA widening")
    s = s.replace(".text\n", ".text\n.p2align 12\n")
    return s

if __name__ == "__main__":
    import sol, genS, genT
    n = []
    def em(nm, s):
        open(f"../var/{nm}.s", "w").write(s); n.append(f"var/{nm}.s")
    W = "sc0 sc1"
    kw = dict(xcd=False, halffirst=False, hold=0, st2="nt", st1b="nt")
    em("Q_base", gen(**kw))
    em("Q_gb1", gen(gbpos=1, apos=1, **kw))
    em("Q_gb2", gen(gbpos=2, apos=1, **kw))
    em("Q_a1", gen(apos=1, **kw))
    em("Q_x8", gen(karg="x8", **kw))
    em("Q_ai", gen(alpha_imm=True, **kw))
    em("Q_gb1lf", gen(gbpos=1, apos=1, late_fill=True, **kw))
    em("Q_gbnt", gen(gbld="nt", **kw))
    em("Q_r12", gen(rounds=1, rounds2=2, **kw))
    em("Q_r21", gen(rounds=2, rounds2=1, **kw))
    em("Q_p01", gen(prio=(0,1), **kw))
    em("Q_p10", gen(prio=(1,0), **kw))
    print(" ".join(n))
```

```python
from genF import gen
import re
s = gen(gbpos=1)
s = re.sub(r"^\s*;@\w+\n", "", s, flags=re.M)
DOC = """; DeepNorm: out = LayerNorm(alpha*x + f) * g + b, 8192 rows of 448 bf16, fp32 math.
"""
s = s.replace("; layout D, two generations\n", DOC)
def after(line, text, count=1):
    global s
    assert line in s, line
    s = s.replace(line, line + text, count)
def before(line, text, nth=0):
    global s
    pos = -1
    for _ in range(nth + 1):
        pos = s.index(line, pos + 1)
    s = s[:pos] + text + s[pos:]
def tail(line, comment, nth=0):
    global s
    pos = -1
    for _ in range(nth + 1):
        pos = s.index(line + "\n", pos + 1)
    s = s[:pos] + (line.ljust(60) + " ; " + comment) + s[pos + len(line):]
before(".p2align 12\n", "; page-align the code: the instruction prefetch does not cross a 4 KiB page\n")
before("    s_load_dwordx16", "    ; s[4:5]=x s[6:7]=f s[8:9]=g s[10:11]=b s[12:13]=alpha s[14:15]=out\n")
tail("    v_readfirstlane_b32 s32, v0", "s32 = 64 * wave index")
tail("    v_lshrrev_b32 v1, 4, v0", "row inside the workgroup")
tail("    s_mul_i32 s3, s2, 28672", "workgroup byte base (32 rows)")
tail("    v_lshl_add_u32 v0, v2, 3, v1", "v0 = row base + 8 * (lane & 15)  (8-byte chunk)")
tail("    v_lshl_add_u32 v1, v2, 4, v1", "v1 = row base + 16 * (lane & 15) (16-byte chunks)")
tail("    v_lshlrev_b32 v3, 5, v3", "LDS write address of the widened g / b")
tail("    v_lshlrev_b32 v59, 4, v59", "g / b byte offset (lanes 56..63 repeat lane 55, land in the pad)")
tail("    v_lshlrev_b32 v58, 4, v58", "16 * (lane & 3): bit position of this lane's diagonal entry")
tail("    v_lshlrev_b32 v56, 5, v2", "LDS read address, 16-byte chunks")
tail("    v_lshlrev_b32 v57, 4, v2", "LDS read address, 8-byte chunk")
tail("    s_movk_i32 s28, 0x3f80", "bf16 1.0")
tail("    s_cbranch_scc1 L_exit", "workgroups past the data")
tail("    s_cbranch_scc1 L_touch", "second half (goes through the block at +1152 to start its fetch)")
tail("    s_bitcmp1_b32 s32, 6", "first half: even waves widen g, odd waves b")
before("    global_load_dwordx4 v[4:7]", "    ; ---- first half: x -> v[4:17], f -> v[18:31], g or b -> v[32:35]\n")
tail("    s_load_dword s26, s[12:13], 0", "alpha (bf16 in the low half)")
before("    s_waitcnt vmcnt(6)\n    v_lshlrev_b32 v36", "    ; widen g / b to fp32: LDS [0,2048) = g, [2048,4096) = b\n")
before("L_g2:", "    ; ---- second half: same loads, queued behind the first half's\n")
tail("    v_lshlrev_b64 v[118:119], v58, s[28:29]", "A = I (row lane&3 of each 4x4 block)")
tail("    v_mov_b32 v2, 0x3727c5ac", "eps = 1e-5")
tail("    s_mov_b32 s28, 0x3b124925", "1/448")
tail("    s_lshl_b32 s31, s26, 16", "alpha as fp32")
before("    ds_read_b128 v[60:63]", "    ; g -> v[60:87], b -> v[88:115] in this lane's column order\n")
tail("    v_lshlrev_b64 v[116:117], v58, s[26:27]", "A = alpha * I")
tail("    s_cmpk_lt_u32 s32, 256", "SCC = first half, kept to the end")
before("L_p2a:", "    ; ---- first half: normalise, then keep the packed rows until the second half has all its data\n")
before("L_touch:", "; second instruction-fetch window\n")
before("    s_waitcnt vmcnt(6)\n    v_lshlrev_b32 v124", "    ; ---- chunk 0: -K = -(alpha*x0 + f0) of the row's first lane -> v[120:123]\n")
before("    v_mfma_f32_4x4x4_16b_bf16 v[32:35]", "    ; d -> v[32:59]; sum(d) in v[124:125], sum(d^2) in v[126:127]\n")
before("    s_waitcnt vmcnt(4)", "    ; ---- chunk 1 (the scalar adds finish chunk 0 inside the MFMA shadows)\n")
before("    s_waitcnt vmcnt(2)", "    ; ---- chunk 2\n")
before("    s_waitcnt vmcnt(0)", "    ; ---- chunk 3 (8-byte); the second half releases the first half's stores here\n")
before("    v_add_f32 v124, v124, v125", "    ; ---- row statistics over 16 lanes\n")
tail("    v_mul_f32_e64 v124, s28, v124", "m = E[d]")
tail("    v_fma_f32 v126, v126, s28, v2", "E[d^2] + eps")
tail("    v_fma_f32 v126, -v124, v124, v126", "var + eps")
tail("    v_rsq_f32 v126, v126", "r")
tail("    v_mul_f32 v127, -v124, v126", "-m * r")
after("    s_cbranch_scc1 L_p2a\n    s_nop 0\n", "    ; ---- second half: out = (d*r - m*r) * g + b\n")
open("../cdna_kernels/standalone__deepnorm__prompt.s", "w").write(s)
```

```python
from common import *
from genS import f32, offsets

X, F, Y, G, B = 4, 18, 32, 60, 88
AA, A1, CK, S, Q = 116, 118, 120, 124, 126
GR, GU = Y, Y + 4
AD = Y + 24

def gen(ld="nt", st1="nt", st2="nt", W2=1152, touch=True, quarter=False, gbpos=0, comments=False, otouch=False, canary=None, holdbar=True, cpol='', k4=False, lf=False):
    a = Asm()
    c = (lambda s: a("; " + s)) if comments else (lambda s: None)
    yp = lambda i: f"v[{Y+2*i}:{Y+2*i+1}]"
    y4 = lambda h: f"v[{Y+4*h}:{Y+4*h+3}]"
    def ldpair(j):
        if j < 3:
            a(f"global_load_dwordx4 v[{X+4*j}:{X+4*j+3}], v1, s[4:5] offset:{256*j} {ld}")
            a(f"global_load_dwordx4 v[{F+4*j}:{F+4*j+3}], v1, s[6:7] offset:{256*j} {ld}")
        else:
            a(f"global_load_dwordx2 v[{X+12}:{X+13}], v0, s[4:5] offset:768 {ld}")
            a(f"global_load_dwordx2 v[{F+12}:{F+13}], v0, s[6:7] offset:768 {ld}")
    def store(j, pol):
        if j < 3: a(f"global_store_dwordx4 v1, v[{X+4*j}:{X+4*j+3}], s[14:15] offset:{256*j} {pol}")
        else: a(f"global_store_dwordx2 v0, v[{X+12}:{X+13}], s[14:15] offset:768 {pol}")
    def pass2(pol):
        for j in range(4):
            n = 4 if j < 3 else 2
            for k in range(n):
                i = 4*j+k
                a(f"v_pk_fma_f32 {yp(i)}, {yp(i)}, v[{Q}:{Q+1}], v[{Q}:{Q+1}] op_sel:[0,0,1] op_sel_hi:[1,0,1]")
            for k in range(n):
                i = 4*j+k
                a(f"v_pk_fma_f32 {yp(i)}, {yp(i)}, v[{G+2*i}:{G+2*i+1}], v[{B+2*i}:{B+2*i+1}]")
            for k in range(n):
                i = 4*j+k
                a(f"v_cvt_pk_bf16_f32 v{X+i}, v{Y+2*i}, v{Y+2*i+1}")
            if pol is not None: store(j, pol)
    a(";@T0")
    c("s[4:5]=x s[6:7]=f s[8:9]=g s[10:11]=b s[12:13]=alpha s[14:15]=out (one scalar load for all pointers)")
    a(f"""
    {"s_load_dwordx4 s[4:7], s[0:1], 0" if k4 else "s_load_dwordx16 s[4:19], s[0:1], 0"}
    v_readfirstlane_b32 s32, v0
    v_lshrrev_b32 v1, 4, v0
    s_mul_i32 s3, s2, {32*ROWB}
    v_mul_u32_u24 v1, {ROWB}, v1
    v_and_b32 v2, 15, v0
    v_and_b32 v3, 63, v0
    v_add_u32 v1, s3, v1
    v_and_b32 v{AD+2}, 3, v0
    v_lshl_add_u32 v0, v2, 3, v1
    v_lshl_add_u32 v1, v2, 4, v1
    v_min_u32 v{AD+3}, 55, v3
    v_lshlrev_b32 v3, 5, v3
    v_lshlrev_b32 v{AD+3}, 4, v{AD+3}
    v_lshlrev_b32 v{AD+2}, 4, v{AD+2}
    v_lshlrev_b32 v{AD}, 5, v2
    v_lshlrev_b32 v{AD+1}, 4, v2
    {f"v_mov_b32_e64 v{S}, s3" if otouch else ""}
    s_movk_i32 s28, 0x3f80
    s_mov_b32 s29, 0
    s_mov_b32 s27, 0
    s_cmpk_ge_u32 s2, 256
    s_cbranch_scc1 L_exit
    s_cmpk_ge_u32 s32, 256
    s_cbranch_scc1 {"L_touch" if touch else "L_g2"}
    s_bitcmp1_b32 s32, 6
    s_waitcnt lgkmcnt(0)
    ;@T1
    """)
    def gbl():
        a("s_cselect_b64 s[8:9], s[10:11], s[8:9]")
        a(f"global_load_dwordx4 v[{GR}:{GR+3}], v{AD+3}, s[8:9]")
        a("s_cselect_b32 s33, 2048, 0")
        if otouch: a(f"global_load_dword v{S+1}, v{S}, s[14:15]")
        a("s_load_dword s26, s[12:13], 0")
    if k4:
        a(f"global_load_dwordx4 v[{X}:{X+3}], v1, s[4:5] {ld}")
        a("s_load_dwordx8 s[8:15], s[0:1], 16")
        a(f"global_load_dwordx4 v[{F}:{F+3}], v1, s[6:7] {ld}")
        if gbpos == 1: a("s_waitcnt lgkmcnt(0)"); gbl()
        ldpair(1)
        if gbpos == 2: a("s_waitcnt lgkmcnt(0)"); gbl()
        a("s_barrier"); ldpair(2)
        if gbpos == 3: a("s_waitcnt lgkmcnt(0)"); gbl()
        ldpair(3); a("s_barrier")
    else:
        if gbpos == 0: gbl()
        ldpair(0)
        if gbpos == 1: gbl()
        ldpair(1); a("s_barrier"); ldpair(2); ldpair(3); a("s_barrier")
    if lf: a("s_barrier")
    a(f"""
    s_mov_b32 s30, 0xffff0000
    v_add_u32 v3, s33, v3
    s_waitcnt vmcnt({8-2*gbpos})
    """)
    for k in range(4):
        a(f"v_lshlrev_b32 v{GU+2*k}, 16, v{GR+k}")
        a(f"v_and_b32 v{GU+2*k+1}, s30, v{GR+k}")
    a(f"""
    ds_write_b128 v3, v[{GU}:{GU+3}]
    ds_write_b128 v3, v[{GU+4}:{GU+7}] offset:16
    {"" if lf else "s_barrier"}
    s_branch L_join
L_g2:
    s_waitcnt lgkmcnt(0)
    {"s_load_dwordx4 s[12:15], s[0:1], 32" if k4 else ""}
    s_barrier
    {"s_waitcnt lgkmcnt(0)" if k4 else ""}
    s_load_dword s26, s[12:13], 0
    s_barrier
    """)
    fixal = True
    ldpair(0); ldpair(1); a("s_barrier"); ldpair(2); ldpair(3)
    a(f"""
L_join:
    v_lshlrev_b64 v[{A1}:{A1+1}], v{AD+2}, s[28:29]
    v_mov_b32 v2, {f32(1e-5)}
    s_mov_b32 s28, {f32(1.0/448)}
    s_waitcnt lgkmcnt(0)
    s_barrier
    s_lshl_b32 s31, s26, 16
    s_lshr_b32 s26, s31, 16
    """)
    for j in range(3):
        a(f"ds_read_b128 v[{G+8*j}:{G+8*j+3}], v{AD} offset:{512*j}")
        a(f"ds_read_b128 v[{G+8*j+4}:{G+8*j+7}], v{AD} offset:{512*j+16}")
        a(f"ds_read_b128 v[{B+8*j}:{B+8*j+3}], v{AD} offset:{2048+512*j}")
        a(f"ds_read_b128 v[{B+8*j+4}:{B+8*j+7}], v{AD} offset:{2048+512*j+16}")
    a(f"ds_read_b128 v[{G+24}:{G+27}], v{AD+1} offset:1536")
    a(f"ds_read_b128 v[{B+24}:{B+27}], v{AD+1} offset:{2048+1536}")
    a(f"v_lshlrev_b64 v[{AA}:{AA+1}], v{AD+2}, s[26:27]")
    a("s_cmpk_lt_u32 s32, 256")
    a("s_branch L_main")
    a("L_p2a:")
    def can():
        if canary[1] == 1:
            a(f"v_readfirstlane_b32 s33, v1")
            a("s_nop 0")
            a(f"v_mov_b32 v3, s33")
            a(f"global_load_dword v2, v3, s[14:15] {cpol}")
        elif canary[1] == 4:
            a(f"v_mov_b32_dpp v3, v1 row_newbcast:0 row_mask:0xf bank_mask:0xf")
            a(f"global_load_dword v2, v3, s[14:15] {cpol}")
    if canary and canary[0] == "pre": can()
    pass2(None)
    if canary and canary[0] == "post": can()
    if holdbar: a("s_barrier")
    if canary and canary[0] == "bar": can()
    if canary: a("s_waitcnt vmcnt(0)")
    for j in range(4): store(j, st1)
    a("L_exit:")
    a("s_endpgm")
    a(f".org {NAME}+{W2}, 0")
    a("L_touch:")
    a("s_branch L_g2")
    a("s_nop 0")
    a("L_main:")
    C0 = f"v[{CK}:{CK+3}]"
    MX = lambda h: f"v_mfma_f32_4x4x4_16b_bf16 {y4(h)}, v[{AA}:{AA+1}], v[{X+2*h}:{X+2*h+1}], {C0}"
    MF = lambda h: f"v_mfma_f32_4x4x4_16b_bf16 {y4(h)}, v[{A1}:{A1+1}], v[{F+2*h}:{F+2*h+1}], {y4(h)}"
    def aops(h):
        r = []
        for e in range(4):
            y = Y + 4*h + e
            r.append(f"v_add_f32{{}} v{S+(e&1)}, v{S+(e&1)}, v{y}")
            r.append(f"v_fmac_f32{{}} v{Q+(e&1)}, v{y}, v{y}")
        return r
    def pkacc(h):
        for i in (2*h, 2*h+1):
            a(f"v_pk_add_f32 v[{S}:{S+1}], v[{S}:{S+1}], {yp(i)}")
            a(f"v_pk_fma_f32 v[{Q}:{Q+1}], {yp(i)}, {yp(i)}, v[{Q}:{Q+1}]")
    a("s_waitcnt vmcnt(6)")
    a(";@R")
    a(f"v_lshlrev_b32 v{S}, 16, v{X}")
    a(f"v_lshlrev_b32_e64 v{S+1}, 16, v{F}")
    a(f"v_fma_f32 v{S}, -s31, v{S}, -v{S+1}")
    a("s_nop 0\ns_nop 0")
    for k in range(4):
        a(f"v_mov_b32_dpp v{CK+k}, v{S} row_newbcast:0 row_mask:0xf bank_mask:0xf")
    a("s_nop 0\ns_nop 0")
    a(MX(0)); a(MX(1)); a("s_nop 0\ns_nop 0"); a(MF(0)); a(MF(1))
    a("s_nop 1\ns_nop 1")
    a(f"v_pk_add_f32 v[{S}:{S+1}], {yp(0)}, {yp(1)}")
    a(f"v_pk_mul_f32 v[{Q}:{Q+1}], {yp(0)}, {yp(0)}")
    a(f"v_pk_fma_f32 v[{Q}:{Q+1}], {yp(1)}, {yp(1)}, v[{Q}:{Q+1}]")
    for ch in (1, 2):
        ops = aops(2*ch - 1)
        a(f"s_waitcnt vmcnt({6-2*ch})")
        a(";@R")
        a(ops[0].format(""))
        a(MX(2*ch)); a(ops[1].format("_e64")); a(MX(2*ch+1)); a(ops[2].format("_e64"))
        a(MF(2*ch)); a(ops[3].format("_e64")); a(MF(2*ch+1))
        for o in ops[4:]: a(o.format(""))
        pkacc(2*ch)
    ops = aops(5)
    a("s_waitcnt vmcnt(0)")
    a(";@R")
    if holdbar: a("s_cbranch_scc1 L_nb\ns_barrier\nL_nb:")
    a(ops[0].format(""))
    a(MX(6)); a(ops[1].format("")); a(ops[2].format("")); a(MF(6))
    for o in ops[3:7]: a(o.format(""))
    a(ops[7].format("_e64"))
    pkacc(6)
    mods = ["quad_perm:[1,0,3,2]", "quad_perm:[2,3,0,1]", "row_half_mirror", "row_mirror"]
    a(f"v_add_f32 v{S}, v{S}, v{S+1}")
    a(f"v_add_f32 v{Q}, v{Q}, v{Q+1}")
    for n, m in enumerate(mods):
        a("v_nop_e64")
        a(f"v_add_f32_dpp v{S}, v{S}, v{S} {m} row_mask:0xf bank_mask:0xf")
        a(f"v_add_f32_dpp v{Q}, v{Q}, v{Q} {m} row_mask:0xf bank_mask:0xf")
    a(f"v_mul_f32_e64 v{S}, s28, v{S}")
    a(f"v_fma_f32 v{Q}, v{Q}, s28, v2")
    a(f"v_fma_f32 v{Q}, -v{S}, v{S}, v{Q}")
    a(f"v_rsq_f32 v{Q}, v{Q}")
    a("s_waitcnt lgkmcnt(0)")
    a(f"v_mul_f32 v{Q+1}, -v{S}, v{Q}")
    a("s_cbranch_scc1 L_p2a\ns_nop 0")
    pass2(st2)
    a(";@E")
    a("s_endpgm")
    txt = a.text()
    t0 = txt[:txt.index("L_join:\n")]
    off = offsets(t0.replace("L_exit", "L_g2").replace("L_touch", "L_g2").replace("L_join", "L_g2") + "s_endpgm")
    if max(off.values()) % 8: txt = txt.replace("L_join:\n", "    s_nop 0\nL_join:\n")
    s = wrap(txt, 256, 512, 4096, 128, 34, "layout D, two generations")
    s = s.replace(".text\n", ".text\n.p2align 12\n")
    return s

if __name__ == "__main__":
    import genV
    n = []
    def em(nm, s):
        open(f"../var/{nm}.s", "w").write(s); n.append(f"var/{nm}.s")
    W = "sc0 sc1"
    em("K_base", gen(gbpos=1))
    em("K_k4g2", gen(gbpos=2, k4=True))
    em("K_k4g1", gen(gbpos=1, k4=True))
    em("K_k4g3lf", gen(gbpos=3, k4=True, lf=True))
    em("K_k4g2lf", gen(gbpos=2, k4=True, lf=True))
    em("K_base_b", gen(gbpos=1))
    em("K_k4g2_b", gen(gbpos=2, k4=True))
    print(" ".join(n))
```

```python
from genF import gen
import re
s = gen(gbpos=2, k4=True)
s = re.sub(r"^\s*;@\w+\n", "", s, flags=re.M)
DOC = """; DeepNorm: out = LayerNorm(alpha*x + f) * g + b, 8192 rows of 448 bf16, fp32 math.
"""
s = s.replace("; layout D, two generations\n", DOC)
def after(line, text, count=1):
    global s
    assert line in s, line
    s = s.replace(line, line + text, count)
def before(line, text, nth=0):
    global s
    pos = -1
    for _ in range(nth + 1):
        pos = s.index(line, pos + 1)
    s = s[:pos] + text + s[pos:]
def tail(line, comment, nth=0):
    global s
    pos = -1
    for _ in range(nth + 1):
        pos = s.index(line + "\n", pos + 1)
    s = s[:pos] + (line.ljust(60) + " ; " + comment) + s[pos + len(line):]
before(".p2align 12\n", "; page-align the code: the instruction prefetch does not cross a 4 KiB page\n")
before("    s_load_dwordx4 s[4:7]", "    ; s[4:5]=x s[6:7]=f now (the short load returns first); s[8:9]=g s[10:11]=b s[12:13]=alpha s[14:15]=out later\n")
tail("    v_readfirstlane_b32 s32, v0", "s32 = 64 * wave index")
tail("    v_lshrrev_b32 v1, 4, v0", "row inside the workgroup")
tail("    s_mul_i32 s3, s2, 28672", "workgroup byte base (32 rows)")
tail("    v_lshl_add_u32 v0, v2, 3, v1", "v0 = row base + 8 * (lane & 15)  (8-byte chunk)")
tail("    v_lshl_add_u32 v1, v2, 4, v1", "v1 = row base + 16 * (lane & 15) (16-byte chunks)")
tail("    v_lshlrev_b32 v3, 5, v3", "LDS write address of the widened g / b")
tail("    v_lshlrev_b32 v59, 4, v59", "g / b byte offset (lanes 56..63 repeat lane 55, land in the pad)")
tail("    v_lshlrev_b32 v58, 4, v58", "16 * (lane & 3): bit position of this lane's diagonal entry")
tail("    v_lshlrev_b32 v56, 5, v2", "LDS read address, 16-byte chunks")
tail("    v_lshlrev_b32 v57, 4, v2", "LDS read address, 8-byte chunk")
tail("    s_movk_i32 s28, 0x3f80", "bf16 1.0")
tail("    s_cbranch_scc1 L_exit", "workgroups past the data")
tail("    s_cbranch_scc1 L_touch", "second half (goes through the block at +1152 to start its fetch)")
tail("    s_bitcmp1_b32 s32, 6", "first half: even waves widen g, odd waves b")
before("    global_load_dwordx4 v[4:7]", "    ; ---- first half: x -> v[4:17], f -> v[18:31], g or b -> v[32:35]\n")
tail("    s_load_dword s26, s[12:13], 0", "alpha (bf16 in the low half)")
before("    s_waitcnt vmcnt(4)\n    v_lshlrev_b32 v36", "    ; widen g / b to fp32: LDS [0,2048) = g, [2048,4096) = b\n")
before("L_g2:", "    ; ---- second half: same loads, queued behind the first half's\n")
tail("    v_lshlrev_b64 v[118:119], v58, s[28:29]", "A = I (row lane&3 of each 4x4 block)")
tail("    v_mov_b32 v2, 0x3727c5ac", "eps = 1e-5")
tail("    s_mov_b32 s28, 0x3b124925", "1/448")
tail("    s_lshl_b32 s31, s26, 16", "alpha as fp32")
before("    ds_read_b128 v[60:63]", "    ; g -> v[60:87], b -> v[88:115] in this lane's column order\n")
tail("    v_lshlrev_b64 v[116:117], v58, s[26:27]", "A = alpha * I")
tail("    s_cmpk_lt_u32 s32, 256", "SCC = first half, kept to the end")
before("L_p2a:", "    ; ---- first half: normalise, then keep the packed rows until the second half has all its data\n")
before("L_touch:", "; second instruction-fetch window\n")
before("    s_waitcnt vmcnt(6)\n    v_lshlrev_b32 v124", "    ; ---- chunk 0: -K = -(alpha*x0 + f0) of the row's first lane -> v[120:123]\n")
before("    v_mfma_f32_4x4x4_16b_bf16 v[32:35]", "    ; d -> v[32:59]; sum(d) in v[124:125], sum(d^2) in v[126:127]\n")
before("    s_waitcnt vmcnt(4)\n    v_add_f32", "    ; ---- chunk 1 (the scalar adds finish chunk 0 inside the MFMA shadows)\n")
before("    s_waitcnt vmcnt(2)", "    ; ---- chunk 2\n")
before("    s_waitcnt vmcnt(0)", "    ; ---- chunk 3 (8-byte); the second half releases the first half's stores here\n")
before("    v_add_f32 v124, v124, v125", "    ; ---- row statistics over 16 lanes\n")
tail("    v_mul_f32_e64 v124, s28, v124", "m = E[d]")
tail("    v_fma_f32 v126, v126, s28, v2", "E[d^2] + eps")
tail("    v_fma_f32 v126, -v124, v124, v126", "var + eps")
tail("    v_rsq_f32 v126, v126", "r")
tail("    v_mul_f32 v127, -v124, v126", "-m * r")
after("    s_cbranch_scc1 L_p2a\n    s_nop 0\n", "    ; ---- second half: out = (d*r - m*r) * g + b\n")
s = s.replace("    s_cbranch_scc1 L_p2a\n    s_nop 0\n", "    s_cbranch_scc1 L_p2a\n    s_nop 0".ljust(85) + " ; keeps the 8-byte instructions below 8-byte aligned\n")
s = s.replace("    s_branch L_g2\n    s_nop 0\n", "    s_branch L_g2\n    s_nop 0".ljust(79) + " ; never executed, aligns L_main\n")
s = s.replace("    v_fma_f32 v124, -s31, v124, -v125\n    s_nop 0\n", "    v_fma_f32 v124, -s31, v124, -v125\n    s_nop 0".ljust(99) + " ; VALU write -> DPP read\n")
s = s.replace("row_newbcast:0 row_mask:0xf bank_mask:0xf\n    s_nop 0\n", "row_newbcast:0 row_mask:0xf bank_mask:0xf\n    s_nop 0".ljust(103) + " ; VALU write -> MFMA read\n")
s = s.replace("v[6:7], v[120:123]\n    s_nop 0\n", "v[6:7], v[120:123]\n    s_nop 0".ljust(80) + " ; MFMA D -> MFMA C\n")
s = s.replace("v[20:21], v[36:39]\n    s_nop 1\n", "v[20:21], v[36:39]\n    s_nop 1".ljust(80) + " ; MFMA D -> VALU read\n")
s = s.replace("    v_add_f32 v126, v126, v127\n    v_nop_e64\n", "    v_add_f32 v126, v126, v127\n    v_nop_e64".ljust(92) + " ; VALU write -> DPP read\n")
open("../cdna_kernels/standalone__deepnorm__prompt.s", "w").write(s)
```

```python
from common import *
from genS import f32, offsets

X, F, Y, G, B = 4, 18, 32, 60, 88
AA, A1, CK, S, Q = 116, 118, 120, 124, 126
GR, GU = Y, Y + 4
AD = Y + 24

def gen(ld="nt", st1="nt", st2="nt", W2=1152, touch=True, quarter=False, gbpos=0, comments=False, otouch=False, canary=None, holdbar=True, cpol='', k4=False, lf=False, g2late=False, rel=0, sched=None, order1=(0,1,2,3)):
    a = Asm()
    c = (lambda s: a("; " + s)) if comments else (lambda s: None)
    yp = lambda i: f"v[{Y+2*i}:{Y+2*i+1}]"
    y4 = lambda h: f"v[{Y+4*h}:{Y+4*h+3}]"
    def ldpair(j):
        if j < 3:
            a(f"global_load_dwordx4 v[{X+4*j}:{X+4*j+3}], v1, s[4:5] offset:{256*j} {ld}")
            a(f"global_load_dwordx4 v[{F+4*j}:{F+4*j+3}], v1, s[6:7] offset:{256*j} {ld}")
        else:
            a(f"global_load_dwordx2 v[{X+12}:{X+13}], v0, s[4:5] offset:768 {ld}")
            a(f"global_load_dwordx2 v[{F+12}:{F+13}], v0, s[6:7] offset:768 {ld}")
    def store(j, pol):
        if j < 3: a(f"global_store_dwordx4 v1, v[{X+4*j}:{X+4*j+3}], s[14:15] offset:{256*j} {pol}")
        else: a(f"global_store_dwordx2 v0, v[{X+12}:{X+13}], s[14:15] offset:768 {pol}")
    def pass2(pol):
        for j in range(4):
            n = 4 if j < 3 else 2
            for k in range(n):
                i = 4*j+k
                a(f"v_pk_fma_f32 {yp(i)}, {yp(i)}, v[{Q}:{Q+1}], v[{Q}:{Q+1}] op_sel:[0,0,1] op_sel_hi:[1,0,1]")
            for k in range(n):
                i = 4*j+k
                a(f"v_pk_fma_f32 {yp(i)}, {yp(i)}, v[{G+2*i}:{G+2*i+1}], v[{B+2*i}:{B+2*i+1}]")
            for k in range(n):
                i = 4*j+k
                a(f"v_cvt_pk_bf16_f32 v{X+i}, v{Y+2*i}, v{Y+2*i+1}")
            if pol is not None: store(j, pol)
    a(";@T0")
    c("s[4:5]=x s[6:7]=f s[8:9]=g s[10:11]=b s[12:13]=alpha s[14:15]=out (one scalar load for all pointers)")
    a(f"""
    {"s_load_dwordx4 s[4:7], s[0:1], 0" if k4 else "s_load_dwordx16 s[4:19], s[0:1], 0"}
    v_readfirstlane_b32 s32, v0
    v_lshrrev_b32 v1, 4, v0
    s_mul_i32 s3, s2, {32*ROWB}
    v_mul_u32_u24 v1, {ROWB}, v1
    v_and_b32 v2, 15, v0
    v_and_b32 v3, 63, v0
    v_add_u32 v1, s3, v1
    v_and_b32 v{AD+2}, 3, v0
    v_lshl_add_u32 v0, v2, 3, v1
    v_lshl_add_u32 v1, v2, 4, v1
    v_min_u32 v{AD+3}, 55, v3
    v_lshlrev_b32 v3, 5, v3
    v_lshlrev_b32 v{AD+3}, 4, v{AD+3}
    v_lshlrev_b32 v{AD+2}, 4, v{AD+2}
    v_lshlrev_b32 v{AD}, 5, v2
    v_lshlrev_b32 v{AD+1}, 4, v2
    {f"v_mov_b32_e64 v{S}, s3" if otouch else ""}
    s_movk_i32 s28, 0x3f80
    s_mov_b32 s29, 0
    s_mov_b32 s27, 0
    s_cmpk_ge_u32 s2, 256
    s_cbranch_scc1 L_exit
    s_cmpk_ge_u32 s32, 256
    s_cbranch_scc1 {"L_touch" if touch else "L_g2"}
    s_bitcmp1_b32 s32, 6
    s_waitcnt lgkmcnt(0)
    ;@T1
    """)
    def gbl():
        a("s_cselect_b64 s[8:9], s[10:11], s[8:9]")
        a(f"global_load_dwordx4 v[{GR}:{GR+3}], v{AD+3}, s[8:9]")
        a("s_cselect_b32 s33, 2048, 0")
        if otouch: a(f"global_load_dword v{S+1}, v{S}, s[14:15]")
        a("s_load_dword s26, s[12:13], 0")
    if k4:
        a(f"global_load_dwordx4 v[{X}:{X+3}], v1, s[4:5] {ld}")
        a("s_load_dwordx8 s[8:15], s[0:1], 16")
        a(f"global_load_dwordx4 v[{F}:{F+3}], v1, s[6:7] {ld}")
        if gbpos == 1: a("s_waitcnt lgkmcnt(0)"); gbl()
        ldpair(1)
        if gbpos == 2: a("s_waitcnt lgkmcnt(0)"); gbl()
        a("s_barrier"); ldpair(2)
        if gbpos == 3: a("s_waitcnt lgkmcnt(0)"); gbl()
        ldpair(3); a("s_barrier")
    else:
        if gbpos == 0: gbl()
        ldpair(0)
        if gbpos == 1: gbl()
        ldpair(1); a("s_barrier"); ldpair(2); ldpair(3); a("s_barrier")
    if lf: a("s_barrier")
    a(f"""
    s_mov_b32 s30, 0xffff0000
    v_add_u32 v3, s33, v3
    s_waitcnt vmcnt({8-2*gbpos})
    """)
    for k in range(4):
        a(f"v_lshlrev_b32 v{GU+2*k}, 16, v{GR+k}")
        a(f"v_and_b32 v{GU+2*k+1}, s30, v{GR+k}")
    a(f"""
    ds_write_b128 v3, v[{GU}:{GU+3}]
    ds_write_b128 v3, v[{GU+4}:{GU+7}] offset:16
    {"" if lf else "s_barrier"}
    s_branch L_join
L_g2:
    {"s_barrier" if g2late else "s_waitcnt lgkmcnt(0)"}
    {"s_load_dwordx4 s[12:15], s[0:1], 32" if k4 else ""}
    {"" if g2late else "s_barrier"}
    {"s_waitcnt lgkmcnt(0)" if k4 else ""}
    s_load_dword s26, s[12:13], 0
    s_barrier
    """)
    fixal = True
    ldpair(0); ldpair(1); a("s_barrier"); ldpair(2); ldpair(3)
    a(f"""
L_join:
    v_lshlrev_b64 v[{A1}:{A1+1}], v{AD+2}, s[28:29]
    v_mov_b32 v2, {f32(1e-5)}
    s_mov_b32 s28, {f32(1.0/448)}
    s_waitcnt lgkmcnt(0)
    s_barrier
    s_lshl_b32 s31, s26, 16
    s_lshr_b32 s26, s31, 16
    """)
    for j in range(3):
        a(f"ds_read_b128 v[{G+8*j}:{G+8*j+3}], v{AD} offset:{512*j}")
        a(f"ds_read_b128 v[{G+8*j+4}:{G+8*j+7}], v{AD} offset:{512*j+16}")
        a(f"ds_read_b128 v[{B+8*j}:{B+8*j+3}], v{AD} offset:{2048+512*j}")
        a(f"ds_read_b128 v[{B+8*j+4}:{B+8*j+7}], v{AD} offset:{2048+512*j+16}")
    a(f"ds_read_b128 v[{G+24}:{G+27}], v{AD+1} offset:1536")
    a(f"ds_read_b128 v[{B+24}:{B+27}], v{AD+1} offset:{2048+1536}")
    a(f"v_lshlrev_b64 v[{AA}:{AA+1}], v{AD+2}, s[26:27]")
    a("s_cmpk_lt_u32 s32, 256")
    a("s_branch L_main")
    a("L_p2a:")
    def can():
        if canary[1] == 1:
            a(f"v_readfirstlane_b32 s33, v1")
            a("s_nop 0")
            a(f"v_mov_b32 v3, s33")
            a(f"global_load_dword v2, v3, s[14:15] {cpol}")
        elif canary[1] == 4:
            a(f"v_mov_b32_dpp v3, v1 row_newbcast:0 row_mask:0xf bank_mask:0xf")
            a(f"global_load_dword v2, v3, s[14:15] {cpol}")
    if canary and canary[0] == "pre": can()
    pass2(None)
    if canary and canary[0] == "post": can()
    if sched:
        k = 0
        for pt in sorted(sched, reverse=True):
            a("s_barrier")
            for j in order1[k:k+sched[pt]]: store(j, st1)
            k += sched[pt]
        assert k == 4
    else:
        if holdbar: a("s_barrier")
        if canary and canary[0] == "bar": can()
        if canary: a("s_waitcnt vmcnt(0)")
        for j in order1: store(j, st1)
    a("L_exit:")
    a("s_endpgm")
    a(f".org {NAME}+{W2}, 0")
    a("L_touch:")
    a("s_branch L_g2")
    a("s_nop 0")
    a("L_main:")
    C0 = f"v[{CK}:{CK+3}]"
    MX = lambda h: f"v_mfma_f32_4x4x4_16b_bf16 {y4(h)}, v[{AA}:{AA+1}], v[{X+2*h}:{X+2*h+1}], {C0}"
    MF = lambda h: f"v_mfma_f32_4x4x4_16b_bf16 {y4(h)}, v[{A1}:{A1+1}], v[{F+2*h}:{F+2*h+1}], {y4(h)}"
    def aops(h):
        r = []
        for e in range(4):
            y = Y + 4*h + e
            r.append(f"v_add_f32{{}} v{S+(e&1)}, v{S+(e&1)}, v{y}")
            r.append(f"v_fmac_f32{{}} v{Q+(e&1)}, v{y}, v{y}")
        return r
    def pkacc(h):
        for i in (2*h, 2*h+1):
            a(f"v_pk_add_f32 v[{S}:{S+1}], v[{S}:{S+1}], {yp(i)}")
            a(f"v_pk_fma_f32 v[{Q}:{Q+1}], {yp(i)}, {yp(i)}, v[{Q}:{Q+1}]")
    def relbar(pt):
        if sched and pt in sched: a(f"s_cbranch_scc1 L_nb{pt}\ns_barrier\nL_nb{pt}:")
    if sched: rel = None
    a("s_waitcnt vmcnt(6)")
    a(";@R")
    relbar(6)
    a(f"v_lshlrev_b32 v{S}, 16, v{X}")
    a(f"v_lshlrev_b32_e64 v{S+1}, 16, v{F}")
    a(f"v_fma_f32 v{S}, -s31, v{S}, -v{S+1}")
    a("s_nop 0\ns_nop 0")
    for k in range(4):
        a(f"v_mov_b32_dpp v{CK+k}, v{S} row_newbcast:0 row_mask:0xf bank_mask:0xf")
    a("s_nop 0\ns_nop 0")
    a(MX(0)); a(MX(1)); a("s_nop 0\ns_nop 0"); a(MF(0)); a(MF(1))
    a("s_nop 1\ns_nop 1")
    a(f"v_pk_add_f32 v[{S}:{S+1}], {yp(0)}, {yp(1)}")
    a(f"v_pk_mul_f32 v[{Q}:{Q+1}], {yp(0)}, {yp(0)}")
    a(f"v_pk_fma_f32 v[{Q}:{Q+1}], {yp(1)}, {yp(1)}, v[{Q}:{Q+1}]")
    for ch in (1, 2):
        ops = aops(2*ch - 1)
        a(f"s_waitcnt vmcnt({6-2*ch})")
        a(";@R")
        relbar(6-2*ch)
        if rel == 6-2*ch: a("s_cbranch_scc1 L_nb\ns_barrier\nL_nb:")
        a(ops[0].format(""))
        a(MX(2*ch)); a(ops[1].format("_e64")); a(MX(2*ch+1)); a(ops[2].format("_e64"))
        a(MF(2*ch)); a(ops[3].format("_e64")); a(MF(2*ch+1))
        for o in ops[4:]: a(o.format(""))
        pkacc(2*ch)
    ops = aops(5)
    if rel == 1: a("s_waitcnt vmcnt(1)\ns_cbranch_scc1 L_nb\ns_barrier\nL_nb:\ns_nop 0")
    a("s_waitcnt vmcnt(0)")
    a(";@R")
    relbar(0)
    if holdbar and rel == 0: a("s_cbranch_scc1 L_nb\ns_barrier\nL_nb:")
    a(ops[0].format(""))
    a(MX(6)); a(ops[1].format("")); a(ops[2].format("")); a(MF(6))
    for o in ops[3:7]: a(o.format(""))
    a(ops[7].format("_e64"))
    pkacc(6)
    mods = ["quad_perm:[1,0,3,2]", "quad_perm:[2,3,0,1]", "row_half_mirror", "row_mirror"]
    a(f"v_add_f32 v{S}, v{S}, v{S+1}")
    a(f"v_add_f32 v{Q}, v{Q}, v{Q+1}")
    for n, m in enumerate(mods):
        a("v_nop_e64")
        a(f"v_add_f32_dpp v{S}, v{S}, v{S} {m} row_mask:0xf bank_mask:0xf")
        a(f"v_add_f32_dpp v{Q}, v{Q}, v{Q} {m} row_mask:0xf bank_mask:0xf")
    a(f"v_mul_f32_e64 v{S}, s28, v{S}")
    a(f"v_fma_f32 v{Q}, v{Q}, s28, v2")
    a(f"v_fma_f32 v{Q}, -v{S}, v{S}, v{Q}")
    a(f"v_rsq_f32 v{Q}, v{Q}")
    a("s_waitcnt lgkmcnt(0)")
    a(f"v_mul_f32 v{Q+1}, -v{S}, v{Q}")
    a("s_cbranch_scc1 L_p2a\ns_nop 0")
    pass2(st2)
    a(";@E")
    a("s_endpgm")
    txt = a.text()
    t0 = txt[:txt.index("L_join:\n")]
    off = offsets(t0.replace("L_exit", "L_g2").replace("L_touch", "L_g2").replace("L_join", "L_g2") + "s_endpgm")
    if max(off.values()) % 8: txt = txt.replace("L_join:\n", "    s_nop 0\nL_join:\n")
    s = wrap(txt, 256, 512, 4096, 128, 34, "layout D, two generations")
    s = s.replace(".text\n", ".text\n.p2align 12\n")
    return s

if __name__ == "__main__":
    import genV
    n = []
    def em(nm, s):
        open(f"../var/{nm}.s", "w").write(s); n.append(f"var/{nm}.s")
    W = "sc0 sc1"
    kw = dict(gbpos=1, k4=True)
    em("E_r2", gen(rel=2, **kw))
    em("E_r0", gen(rel=0, **kw))
    em("E_r2_lf", gen(rel=2, lf=True, **kw))
    em("E_r0_lf", gen(rel=0, lf=True, **kw))
    em("E_r2_g2", gen(rel=2, gbpos=2, k4=True))
    em("E_r0_g2", gen(rel=0, gbpos=2, k4=True))
    print(" ".join(n))
```

```python
from genF import gen
from instr import instrument_ws
import re, sys
def fx(s):
    s = s.replace("s_cbranch_scc1 L_exit", "s_cbranch_scc1 L_dbg_done")
    s = s.replace("L_exit:\n    s_endpgm\n", "    s_branch L_fin\n").replace("    s_endpgm\n", "L_fin:\n    s_endpgm\n")
    s = s.replace("    ;@T1\n", "").replace("    ;@E\n", "")
    k = [0]
    def r(m):
        k[0] += 1
        return "    ;@T5\n" if k[0] == 4 else ""
    return re.sub(r"    ;@R\n", r, s)
def mk(nm, q32, thr, wait=1500, **kw):
    s = instrument_ws(fx(gen(**kw)), 2048 if wait else 64, 8, amp="lmid", mid=5, wait=wait, ampk=1)
    old = "    s_min_u32 s57, s84, 5000\n    s_mul_i32 s57, s57, 1\n"
    assert old in s
    new = f"""    s_lshr_b32 s86, s60, 2
    s_mul_i32 s86, s86, 0x9e3779b1
    s_lshr_b32 s86, s86, 27
    s_cmp_lt_u32 s86, {q32}
    s_cselect_b32 s57, 5000, 0
    s_cmp_gt_u32 s84, {thr}
    s_cselect_b32 s57, 5000, s57
"""
    s = s.replace(old, new)
    s = s.replace(".org standalone__deepnorm__prompt_kernel+1152", ".org standalone__deepnorm__prompt_kernel+1152")
    open(f"../var/{nm}.s", "w").write(s)
    return f"var/{nm}.s"
if __name__ == "__main__":
    kw = dict(gbpos=2, k4=True)
    for q in (0, 8, 10, 12, 13, 14):
        mk(f"PQ_{q}", q, 365, **kw)
        mk(f"PN_{q}", q, 100000, **kw)
    print(mk("PQb_i", 0, 365, wait=0, **kw))
```
